```python
import torch

def _softmax(x, axis=-1):
    return torch.softmax(x, dim=axis)
def _gelu(x):
    return torch.nn.functional.gelu(x, approximate="tanh")
def _silu(x):
    return torch.nn.functional.silu(x)
def _sigmoid(x):
    return torch.sigmoid(x)
def _layernorm(x, axis=-1, eps=1e-5):
    m = x.mean(dim=axis, keepdim=True)
    v = x.var(dim=axis, keepdim=True, unbiased=False)
    return (x - m) / torch.sqrt(v + eps)
def _scatter_add(tgt, idx, src, axis=0):
    return tgt.clone().index_add_(axis, idx, src)
def _segment_sum(src, seg, n):
    out = torch.zeros((n,) + src.shape[1:], dtype=src.dtype)
    return out.index_add_(0, seg, src)
def _pad(x, pw):
    flat = tuple(v for pair in reversed(pw) for v in pair)
    return torch.nn.functional.pad(x, flat)

kernel_name = 'interleave_layers__mha_block__mixer_token_mlp__prompt'

def setup_inputs():

    _w = (lambda a: (lambda t: t.to(torch.bfloat16) if t.is_floating_point() else t)(torch.as_tensor(a)))
    def _A_setup():
        B, S, D, H = 1, 2048, 640, 32
        return {
            "x": _w((lambda *s: torch.randn(*s, dtype=torch.bfloat16) * 0.05)(B, S, D)),
            "wqkv": _w((lambda *s: torch.randn(*s, dtype=torch.bfloat16) * 0.05)(D, 3 * D)),
            "wo": _w((lambda *s: torch.randn(*s, dtype=torch.bfloat16) * 0.05)(D, D)),
        }
    _A_in = _A_setup()

    def _B_setup():
        B, S, D, F = 1, 2048, 640, 1536
        return {
            "x": _w((lambda *s: torch.randn(*s, dtype=torch.bfloat16) * 0.05)(B, S, D)),
            "w1": _w((lambda *s: torch.randn(*s, dtype=torch.bfloat16) * 0.8)(S, F) * (S ** -0.5)),
            "b1": _w((lambda *s: torch.randn(*s, dtype=torch.bfloat16) * 12.8)(F) * 0.02),
            "w2": _w((lambda *s: torch.randn(*s, dtype=torch.bfloat16) * 0.4)(F, S) * (F ** -0.5)),
            "b2": _w((lambda *s: torch.randn(*s, dtype=torch.bfloat16) * 6.4)(S) * 0.02),
        }
    _B_in = _B_setup()

    return {
        "A_x": _A_in["x"],
        "A_wqkv": _A_in["wqkv"],
        "A_wo": _A_in["wo"],
        "B_x": _B_in["x"],
        "B_w1": _B_in["w1"],
        "B_b1": _B_in["b1"],
        "B_w2": _B_in["w2"],
        "B_b2": _B_in["b2"],
    }

def reference(A_x, A_wqkv, A_wo, B_x, B_w1, B_b1, B_w2, B_b2):
    def _A_ref(x, wqkv, wo):
        B, S, D = x.shape
        H = 32
        Dh = D // H
        qkv = (lambda x, *d: x.permute(*d))((x @ wqkv).reshape(B, S, 3, H, Dh), 2, 0, 3, 1, 4)
        q, k, v = qkv[0], qkv[1], qkv[2]
        scores = torch.einsum("bhqd,bhkd->bhqk", q, k) * (Dh ** -0.5)
        p = _softmax(scores, axis=-1)
        o = torch.einsum("bhqk,bhkd->bhqd", p, v)
        return (lambda x, *d: x.permute(*d))(o, 0, 2, 1, 3).reshape(B, S, D) @ wo

    def _B_ref(x, w1, b1, w2, b2):
        B, S, D = x.shape
        h = _layernorm(x, axis=-1)
        u = torch.einsum("bsd,sf->bdf", h, w1) + b1
        u = _gelu(u)
        y = torch.einsum("bdf,fs->bds", u, w2) + b2
        return (lambda x, *d: x.permute(*d))(y, 0, 2, 1)

    x = A_x
    x = x + _A_ref(_layernorm(x, axis=-1), A_wqkv, A_wo)
    x = x + _B_ref(_layernorm(x, axis=-1), B_w1, B_b1, B_w2, B_b2)
    x = x + _A_ref(_layernorm(x, axis=-1), A_wqkv, A_wo)
    x = x + _B_ref(_layernorm(x, axis=-1), B_w1, B_b1, B_w2, B_b2)
    return x
```

```python
import re
class Asm:
    def __init__(self):
        self.lines=[]
        self.nlab=0
    def e(self, s):
        for ln in s.split("\n"):
            ln=ln.strip()
            if ln: self.lines.append(ln if ln.endswith(":") or ln.startswith(".") else "    "+ln)
    def c(self, s): self.lines.append("    ; "+s)
    def label(self, base="L"):
        self.nlab+=1
        return f"{base}_{self.nlab}"
    def text(self): return "\n".join(self.lines)+"\n"

def vr(b,n=1,k="v"):
    return f"{k}{b}" if n==1 else f"{k}[{b}:{b+n-1}]"
def ar(b,n=1): return vr(b,n,"a")
def sr(b,n=1): return vr(b,n,"s")

REG=re.compile(r"\b([vas])(?:\[(\d+):(\d+)\]|(\d+))")
def regs(tok):
    out=set()
    for m in REG.finditer(tok):
        k=m.group(1)
        if m.group(2): out|={(k,i) for i in range(int(m.group(2)),int(m.group(3))+1)}
        else: out.add((k,int(m.group(4))))
    if "vcc" in tok: out|={("s","vcc")}
    return out
TRANS=("v_exp_","v_log_","v_rcp_","v_rsq_","v_sqrt_","v_sin_","v_cos_")
def passes(op):
    if "32x32x4_2b" in op: return 16
    if "32x32x16" in op: return 8
    if "16x16x32" in op: return 4
    raise Exception(op)
def check(text):
    probs=[]
    hist=[]
    pos=0
    for ln_no,ln in enumerate(text.split("\n")):
        s=ln.split(";")[0].strip()
        if not s or s.endswith(":") or s.startswith("."): continue
        parts=s.split(None,1); op=parts[0]; ops=[x.strip() for x in parts[1].split(",")] if len(parts)>1 else []
        if op=="s_nop":
            pos+=int(ops[0],0)+1; continue
        is_mfma=op.startswith("v_mfma"); is_valu=op.startswith("v_") and not is_mfma
        is_vmem=op.startswith(("buffer_","global_")); is_ds=op.startswith("ds_")
        wr=set(); rd=set()
        if is_mfma:
            wr=regs(ops[0]); A=regs(ops[1]); B=regs(ops[2]); C=regs(ops[3]); rd=A|B|C
        elif is_valu:
            if op.startswith("v_cmp"): wr=regs(ops[0]); rd=set().union(*[regs(x) for x in ops[1:]])
            elif "swap" in op: wr=regs(ops[0])|regs(ops[1]); rd=set(wr)
            else:
                wr=regs(ops[0]); rd=set().union(*[regs(x) for x in ops[1:]]) if len(ops)>1 else set()
                if op.startswith(("v_fmac","v_dot2c")) or "dpp" in op or "sdwa" in op: rd|=wr
                if "_co_" in op: wr|=regs(ops[1])
        elif is_vmem:
            allr=set().union(*[regs(x) for x in ops])
            if "load" in op and " lds" not in s: wr=regs(ops[0]); rd=set().union(*[regs(x) for x in ops[1:]])
            else: rd=allr
        elif is_ds:
            if op.startswith("ds_read"): wr=regs(ops[0]); rd=set().union(*[regs(x) for x in ops[1:]])
            else: rd=set().union(*[regs(x) for x in ops])
        elif op.startswith("s_"):
            rd=set().union(*[regs(x) for x in ops[1:]]) if len(ops)>1 else set()
            wr=regs(ops[0]) if ops else set()
        for (p,kind,d) in hist:
            dist=pos-p-1
            def need(n,why):
                if dist<n: probs.append(f"line {ln_no+1}: {s}  :: {why} need {n} have {dist}")
            if kind=="mfma":
                D,ps,C0,op0=d
                tab={4:(6,8,3),8:(10,12,7),16:(18,20,15)}[ps]
                if is_mfma:
                    if C&D and not (C==D and passes(op)==ps): need(tab[0],"mfma D->C overlap")
                    if (A|B)&D: need(tab[1],"mfma D->A/B")
                    if wr&D and not (C==D and passes(op)==ps) and not (C&D): need(tab[0],"mfma WAW")
                elif (is_valu or is_vmem or is_ds):
                    if (rd|wr)&D: need(tab[1],"mfma D->valu/mem")
                    if is_valu and wr&C0: need(tab[2],"mfma C WAR")
            elif kind=="valu":
                W,op0=d
                vw={x for x in W if x[0]!="s"}; sw={x for x in W if x[0]=="s"}
                if is_mfma and rd&vw: need(2,"valu->mfma")
                if "permlane" in op and rd&vw: need(2,"valu->permlane")
                if is_valu and "dpp" in op and rd&vw: need(2,"valu->dpp")
                if op.startswith(("v_readfirstlane","v_readlane")) and rd&vw: need(1,"valu->readlane")
                if op0.startswith(TRANS) and (is_valu or is_mfma) and not op.startswith(TRANS) and rd&vw: need(1,"trans->valu")
                if is_vmem and rd&sw: need(5,"valu sgpr->vmem")
                if is_valu and rd&sw: need(2,"valu sgpr->valu")
            elif kind=="store":
                if (is_valu or is_mfma) and wr&d: need(2,"store data WAR")
            elif kind=="m0":
                if is_vmem and " lds" in s: need(1,"m0->lds dma")
        if is_mfma: hist.append((pos,"mfma",(wr,passes(op),C,op)))
        elif is_valu: hist.append((pos,"valu",(wr,op)))
        elif is_vmem and "store" in op and ("x4" in op or "x3" in op): hist.append((pos,"store",regs(ops[0])))
        elif op.startswith("s_") and ops and ops[0]=="m0": hist.append((pos,"m0",None))
        pos+=1
        hist=[h for h in hist if pos-h[0]<24]
    return probs
```

```python
from asmlib import *
import math, struct
NAME="interleave_layers__mha_block__mixer_token_mlp__prompt"
def f2u(x): return struct.unpack("<I",struct.pack("<f",x))[0]
CTR=0; XSTAT=0x10000; STAT=0x50000; STAT_L=0x20000
KV=0x100000; KV_L=0x600000; CH=21504
OB=0xD00000; HB=0x1200000; XB_L=0x280000; UB=0x1700000; U_L=0x200000; X2=0x1B00000; WQP=0x2000000; WS_SIZE=0x2310000
def KVC(L): return L*32
AOC=64; OPC=80; G1C=96; XSC=128; NCTR=144
RING=102400; VS=145408; CWT=158208; FLAG=159744; LDS_SIZE=163840
WREG=40960
sX,sWQ,sWO,sW1,sW2,sB1,sB2,sOUT,sDBG,sWS,sPA,sGO=4,8,12,16,20,24,28,32,36,40,44,48
sWave,sL,sQB,sH,sRB,sDT,sDT1,sFT,sG1=52,53,54,55,56,57,58,59,60
sKV,sStep,sSpin,sChunk,sCur=80,81,82,83,84
T0,T1,T2,T3,T4,T5,T6,T7=61,62,63,64,65,66,67,68
sE=70
vL=0; RES=246
SPIN=1<<22
import os
DIAG=int(os.environ.get("DIAG","0"))
WS_SRD=WS_SIZE+(0x100000 if DIAG else 0)
def stamp(a,i):
    if not DIAG: return
    a.e(f"s_memrealtime s[90:91]\ns_lshl_b32 m0, s{sL}, 5\ns_add_u32 m0, m0, {i}\ns_waitcnt lgkmcnt(0)\nv_writelane_b32 v245, s90, m0")
def cstamp(a,i):
    if not DIAG: return
    a.e(f"s_memtime s[90:91]\ns_lshl_b32 m0, s{sL}, 5\ns_add_u32 m0, m0, {i}\ns_waitcnt lgkmcnt(0)\nv_writelane_b32 v245, s90, m0")
def stamp_out(a):
    if not DIAG: return
    stamp(a,31)
    a.e(f"s_lshl_b32 s{T0}, s2, 2\ns_add_u32 s{T0}, s{T0}, s{sWave}\ns_lshl_b32 s{T0}, s{T0}, 8\ns_add_u32 s{T0}, s{T0}, {WS_SIZE}\nv_lshlrev_b32 v2, 2, v{vL}\nbuffer_store_dword v245, v2, {sr(sWS,4)}, s{T0} offen")

class VM:
    def __init__(s,a): s.a=a; s.q=[]
    def issue(s,tag): s.q.append(tag)
    def wait(s,tag):
        if tag not in s.q: return
        idx=max(i for i,t in enumerate(s.q) if t==tag)
        n=len(s.q)-1-idx
        s.a.e(f"s_waitcnt vmcnt({min(n,63)})"); s.q=s.q[idx+1:]
    def clear(s): s.q=[]

def m32(d,a,b,c=None,ak="v"):
    c = vr(d,16) if c is None else c
    return f"v_mfma_f32_32x32x16_bf16 {vr(d,16)}, {vr(a,4,ak)}, {vr(b,4)}, {c}"
def m16(d,a,b,c=None):
    c = vr(d,4) if c is None else c
    return f"v_mfma_f32_16x16x32_bf16 {vr(d,4)}, {vr(a,4)}, {vr(b,4)}, {c}"

def wave0_only(a, fn):
    lab=a.label("W0")
    a.e(f"s_cmp_lg_u32 s{sWave}, 0\ns_cbranch_scc1 {lab}")
    fn(); a.e(f"{lab}:")

def atomic_inc(a, sctr, vt=1):
    a.e(f"""v_mov_b32 v{vt}, 1
s_mov_b64 exec, 1
buffer_atomic_add v{vt}, off, {sr(sWS,4)}, s{sctr} sc1
s_mov_b64 exec, -1""")

def poll(a, srd, soffs, target, vt=1):
    lab=a.label("POLL")
    a.e(f"s_mov_b32 s{sSpin}, {SPIN}\n{lab}:")
    for i,so in enumerate(soffs):
        a.e(f"buffer_load_dword v{vt+i}, off, {sr(srd,4)}, {so} sc1")
    a.e(f"s_sub_u32 s{sSpin}, s{sSpin}, 1\ns_cbranch_scc1 L_exit\ns_waitcnt vmcnt(0)")
    if len(soffs)==2: a.e(f"v_min_u32 v{vt}, v{vt}, v{vt+1}")
    a.e(f"v_cmp_gt_u32 vcc, {target}, v{vt}\ns_cbranch_vccnz {lab}")

def ctr_off(a, dst, base, sidx, lmul):
    a.e(f"s_mul_i32 s{dst}, s{sL}, {lmul}\ns_add_u32 s{dst}, s{dst}, s{sidx}\ns_add_u32 s{dst}, s{dst}, {base}\ns_lshl_b32 s{dst}, s{dst}, 8")

EV=lambda k,d="0":int(os.environ.get(k,d))
NREP=EV("NREP","8")
FLS=0x10000; FB=0x2310000-0x20000
XF,AF,HF,KF,UF=FB,FB+0x2000,FB+0x4000,FB+0x6000,FB+0x8000
sTag=99; vTAG=243; sRep=100
def flag_off(a,dst,base,terms,rep=0):
    a.e(f"s_lshl_b32 s{dst}, s{sL}, 16\ns_add_u32 s{dst}, s{dst}, {base}")
    for sreg,sh in tuple(terms)+(((sRep,rep),) if rep else ()):
        a.e(f"s_lshl_b32 s{T7}, s{sreg}, {sh}\ns_add_u32 s{dst}, s{dst}, s{T7}")
def flag_set(a,soff,rep=0):
    if not rep: a.e(f"s_mov_b64 exec, 1\nbuffer_atomic_swap v{vTAG}, off, {sr(sWS,4)}, s{soff} sc1\ns_mov_b64 exec, -1")
    else: a.e(f"s_mov_b64 exec, {(1<<NREP)-1}\nbuffer_atomic_swap v{vTAG}, v1, {sr(sWS,4)}, s{soff} offen sc1\ns_mov_b64 exec, -1")
def flag_wait(a,va,soff,vt=1):
    lab=a.label("FW")
    a.e(f"""s_mov_b32 s{sSpin}, {SPIN}
{lab}:
buffer_load_dword v{vt}, v{va}, {sr(sWS,4)}, s{soff} offen sc1
s_sub_u32 s{sSpin}, s{sSpin}, 1
s_cbranch_scc1 L_exit
s_waitcnt vmcnt(0)
v_cmp_ne_u32 vcc, s{sTag}, v{vt}
s_cbranch_vccnz {lab}""")
vXA=240; sXO=69; sOwn=101
def sync_begin(a,n,rep):
    a.e(f"v_lshlrev_b32 v1, {rep}, v{vL}\ns_waitcnt vmcnt({n})\ns_barrier")
    wave0_only(a,lambda: flag_set(a,sOwn,rep))
def sync_end(a):
    wave0_only(a,lambda: flag_wait(a,vXA,sXO))
    a.e("s_barrier")
def x_addrs(a):
    lane32x4(a,vXA)
    flag_off(a,sXO,XF,((sQB,7),),10)
    flag_off(a,sOwn,XF,((sRB,5),(sDT,2)))
def lane32x4(a,v): a.e(f"v_and_b32 v{v}, 31, v{vL}\nv_lshlrev_b32 v{v}, 2, v{v}")

def arrive(a, base, sidx, lmul):
    a.e("s_waitcnt vmcnt(0)\ns_barrier")
    def f():
        ctr_off(a,T0,base,sidx,lmul); atomic_inc(a,T0)
    wave0_only(a,f)

def xsum(a, x, t, kinds=(16,32)):
    for k in kinds:
        a.e(f"v_mov_b32 v{t}, v{x}\ns_nop 1\nv_permlane{k}_swap_b32 v{x}, v{t}\nv_add_f32 v{x}, v{x}, v{t}")

def tile_stats(a, U, S, Q, t):
    a.e(f"s_mov_b32 s{T0}, 0xffff0000")
    for i in range(10):
        a.e(f"v_lshlrev_b32 v{U+2*i}, 16, v{RES+i}\nv_and_b32 v{U+2*i+1}, s{T0}, v{RES+i}")
    a.e(f"v_add_f32 v{S}, v{U}, v{U+1}\nv_mul_f32 v{Q}, v{U}, v{U}\nv_fmac_f32 v{Q}, v{U+1}, v{U+1}")
    for i in range(2,20):
        a.e(f"v_add_f32 v{S}, v{S}, v{U+i}\nv_fmac_f32 v{Q}, v{U+i}, v{U+i}")
    xsum(a,S,t); xsum(a,Q,t)

def stat_addr(a, v, base_s):
    a.e(f"""s_lshl_b32 s{T1}, s{sRB}, 2
s_add_u32 s{T1}, s{T1}, s{sWave}
s_lshl_b32 s{T1}, s{T1}, 10
v_and_b32 v{v}, 15, v{vL}
v_lshlrev_b32 v{v}, 6, v{v}
v_add_u32 v{v}, s{T1}, v{v}""")

def wq_dma(a, V):
    t,u=V+9,V+10
    for i in range(9):
        a.e(f"""v_add_u32 v{t}, {64*i}, v{vL}
v_mul_u32_u24 v{V+i}, 7282, v{t}
v_lshrrev_b32 v{V+i}, 16, v{V+i}
v_mul_u32_u24 v{u}, 9, v{V+i}
v_sub_u32 v{t}, v{t}, v{u}
v_mul_u32_u24 v{u}, 22, v{t}
v_lshrrev_b32 v{u}, 6, v{u}
v_mul_u32_u24 v{V+i}, 3840, v{V+i}
v_lshlrev_b32 v{t}, 4, v{t}
v_add_u32 v{V+i}, v{V+i}, v{t}
v_mul_u32_u24 v{u}, 1232, v{u}
v_add_u32 v{V+i}, v{V+i}, v{u}""")
def wq_block(a,V,k,half=False):
    if half: a.e(f"s_and_b32 s{T0}, s{sWave}, 1\ns_add_u32 s{T0}, s{T0}, s{T6}")
    else: a.e(f"s_add_u32 s{T0}, s{sWave}, s{T6}")
    a.e(f"""s_add_u32 s{T0}, s{T0}, {4*k}
s_sub_u32 s{T1}, s{T0}, 10
s_cmp_ge_u32 s{T0}, 10
s_cselect_b32 s{T0}, s{T1}, s{T0}
s_mul_i32 s{T1}, s{T0}, 245760
s_mul_i32 s{T2}, s{sH}, 40
s_add_u32 s{T1}, s{T1}, s{T2}
s_mul_i32 s{T2}, s{T0}, 9216""")
    l1=a.label("WH"); l2=a.label("WE")
    for i in range(9):
        if half and i==0: a.e(f"s_cmp_gt_u32 s{sWave}, 1\ns_cbranch_scc1 {l1}")
        if half and i==5: a.e(f"s_branch {l2}\n{l1}:")
        a.e(f"s_add_u32 m0, s{T2}, {1024*i}\ns_nop 0\nbuffer_load_dwordx4 v{V+i}, {sr(sWQ,4)}, s{T1} offen lds")
    if half: a.e(f"{l2}:")

def prologue(a):
    a.e(f"""s_cmp_ge_u32 s2, 256
s_cbranch_scc1 L_exit
s_load_dwordx16 s[64:79], s[0:1], 0
s_load_dwordx4 s[84:87], s[0:1], 64
s_load_dwordx2 s[88:89], s[0:1], 80
v_lshrrev_b32 v1, 6, v0
v_and_b32 v0, 63, v0
s_nop 0
v_readfirstlane_b32 s{sWave}, v1
s_and_b32 s{T0}, s2, 7
s_lshr_b32 s{T1}, s2, 3
s_lshr_b32 s{T2}, s{T0}, 1
s_and_b32 s{T0}, s{T0}, 1
s_lshl_b32 s{sQB}, s{T2}, 1
s_lshr_b32 s3, s{T1}, 4
s_add_u32 s{sQB}, s{sQB}, s3
s_lshl_b32 s{sH}, s{T0}, 4
s_and_b32 s3, s{T1}, 15
s_add_u32 s{sH}, s{sH}, s3
s_lshl_b32 s{sRB}, s{T2}, 3
s_lshr_b32 s3, s{T1}, 2
s_add_u32 s{sRB}, s{sRB}, s3
s_lshl_b32 s{sDT}, s{T0}, 2
s_and_b32 s3, s{T1}, 3
s_add_u32 s{sDT}, s{sDT}, s3
s_mul_i32 s3, s{T1}, 13
s_lshr_b32 s3, s3, 6
s_mul_i32 s{sFT}, s{T2}, 6
s_add_u32 s{sFT}, s{sFT}, s3
s_mul_i32 s3, s3, 5
s_sub_u32 s3, s{T1}, s3
s_mul_i32 s{sDT1}, s{T0}, 5
s_add_u32 s{sDT1}, s{sDT1}, s3
s_cmp_lt_u32 s{T1}, 30
s_cselect_b32 s{sG1}, 1, 0
s_mov_b32 s{sL}, 0
s_lshr_b32 s{sRep}, s2, 3
s_and_b32 s{sRep}, s{sRep}, {NREP-1}
s_waitcnt lgkmcnt(0)""")
    for srd,p,n in ((sX,64,2621440),(sWQ,66,2457600),(sWO,68,819200),(sW1,72,6291456),(sB1,74,3072),(sW2,76,6291456),(sB2,78,4096),(sOUT,84,2621440),(sDBG,86,256),(sWS,88,WS_SRD),(sGO,88,WS_SIZE)):
        a.e(f"s_mov_b32 s{srd}, s{p}\ns_mov_b32 s{srd+1}, s{p+1}\ns_mov_b32 s{srd+2}, {n}\ns_mov_b32 s{srd+3}, 0x20000")
    stamp(a,0)
    a.e(f"buffer_load_dword v{vTAG}, off, {sr(sWS,4)}, 0 sc1")
    if EV("IPF","0"):
        a.e(f"""s_getpc_b64 s[90:91]
L_pc:
s_lshr_b32 s{T0}, s2, 3
s_lshl_b32 s{T0}, s{T0}, 2
s_add_u32 s{T0}, s{T0}, s{sWave}
s_lshl_b32 s{T0}, s{T0}, 7""")
        for k in range(4):
            a.e(f"""s_add_u32 s{T1}, s{T0}, {16384*k}
s_min_u32 s{T1}, s{T1}, L_exit-L_pc
s_add_u32 s92, s90, s{T1}
s_addc_u32 s93, s91, 0
s_load_dword s{94+k}, s[92:93], 0""")
    a.e(f"""s_lshl_b32 s{T0}, s{sRB}, 2
s_add_u32 s{T0}, s{T0}, s{sWave}
s_mul_i32 s{T0}, s{T0}, {16*1280}
s_mul_i32 s{T1}, s{sDT}, 160
s_add_u32 s{T0}, s{T0}, s{T1}
v_and_b32 v2, 15, v{vL}
v_mul_u32_u24 v2, 1280, v2
v_lshrrev_b32 v3, 4, v{vL}
v_lshl_add_u32 v2, v3, 3, v2""")
    for i in range(5):
        a.e(f"buffer_load_dwordx2 {vr(RES+2*i,2)}, v2, {sr(sX,4)}, s{T0} offen offset:{32*i}")
    a.e(f"""s_lshr_b32 s{T6}, s2, 3
s_mul_i32 s{T6}, s{T6}, 3
s_mul_i32 s{T0}, s{T6}, 205
s_lshr_b32 s{T0}, s{T0}, 11
s_mul_i32 s{T0}, s{T0}, 10
s_sub_u32 s{T6}, s{T6}, s{T0}""")
    a.e(f"""s_lshr_b32 s{T0}, s2, 3
s_lshl_b32 s{T0}, s{T0}, 2
s_add_u32 s{T0}, s{T0}, s{sWave}
s_mul_i32 s{T0}, s{T0}, 75
s_and_b32 s{T1}, s2, 1
s_mul_i32 s{T1}, s{T1}, 640""")
    PF=int(os.environ.get("PF","0"))
    for k in range(2*PF):
        a.e(f"""v_add_u32 v4, s{T0}, v{vL}
v_add_u32 v4, {11*k}, v4
v_mul_u32_u24 v5, 13108, v4
v_lshrrev_b32 v5, 16, v5
v_mul_u32_u24 v5, {1280-640}, v5
v_lshl_add_u32 v4, v4, 7, v5
buffer_load_dword v{8+k}, v4, {sr(sWQ,4)}, s{T1} offen""")
    wq_dma(a,224); wq_block(a,224,0)

def x_prologue(a, vm, RD):
    for t in range(RD):
        x_load(a,vm,t,RD)
def x_load(a,vm,t,RD):
    r=96+(t%RD)*8
    a.e(f"buffer_load_dwordx4 {vr(r,4)}, v2, {sr(sWS,4)}, s{sCur} offen offset:{1024*(t%4)}\nbuffer_load_dwordx4 {vr(r+4,4)}, v3, {sr(sWS,4)}, s{sCur} offen offset:{1024*(t%4)}")
    if t%4==3: a.e(f"s_add_u32 s{sCur}, s{sCur}, 4096")
    vm.issue(("x",t)); vm.issue(("x",t))

def wq_read(a,t,buf):
    base=(4,5) if t<20 else (6,7)
    tt=t if t<20 else t-20
    for T in range(2):
        for u in range(2):
            a.e(f"ds_read_b64_tr_b16 {vr(80+buf*8+T*4+u*2,2)}, v{base[T]} offset:{(16*tt+4*u)*144}")

def frag_addr(a,base):
    a.e(f"""v_and_b32 v5, 15, v{vL}
v_bfe_u32 v6, v{vL}, 4, 1
v_lshrrev_b32 v7, 5, v{vL}
s_lshl_b32 s{T0}, s{sRB}, 1
s_lshr_b32 s{T1}, s{sWave}, 1
s_add_u32 s{T0}, s{T0}, s{T1}
s_mul_i32 s{T0}, s{T0}, 40
s_mul_i32 s{T1}, s{sDT}, 5
s_add_u32 s{T0}, s{T0}, s{T1}
s_lshl_b32 s{T0}, s{T0}, 10
s_and_b32 s{T1}, s{sWave}, 1
s_lshl_b32 s{T1}, s{T1}, 8
s_add_u32 s{T0}, s{T0}, s{T1}
s_add_u32 s{T0}, s{T0}, {base}
v_lshlrev_b32 v5, 4, v5
v_lshl_add_u32 v5, v7, 9, v5
v_lshl_add_u32 v2, v6, 10, v5
v_add_u32 v3, 2048, v2
v_lshl_add_u32 v4, v6, 3, v5
v_add_u32 v4, 4096, v4""")
def x_store(a,srd,B=48):
    for n in range(2):
        a.e(f"v_mov_b32 v{B+4*n}, v{RES+4*n}\nv_mov_b32 v{B+1+4*n}, v{RES+4*n+1}\nv_mov_b32 v{B+2+4*n}, v{RES+4*n+2}\nv_mov_b32 v{B+3+4*n}, v{RES+4*n+3}")
    a.e(f"buffer_store_dwordx2 {vr(RES+8,2)}, v4, {sr(srd,4)}, s{T0} offen sc1")
    for n in range(2):
        a.e(f"v_permlane16_swap_b32 v{B+4*n}, v{B+2+4*n}\nv_permlane16_swap_b32 v{B+1+4*n}, v{B+3+4*n}")
    a.e(f"""buffer_store_dwordx4 {vr(B,4)}, v2, {sr(srd,4)}, s{T0} offen sc1
buffer_store_dwordx4 {vr(B+4,4)}, v3, {sr(srd,4)}, s{T0} offen sc1""")
vCW=244
def wqp_store(a,vl16):
    lab=a.label("NOPACK")
    a.e(f"""s_cmp_lg_u32 s{sL}, 0
s_cbranch_scc1 {lab}
s_lshl_b32 s{T0}, s{sQB}, 2
s_add_u32 s{T0}, s{T0}, s{sWave}
s_lshl_b32 s{T1}, s{T0}, 10
s_mul_i32 s{T2}, s{sH}, 92160
s_add_u32 s{T1}, s{T1}, s{T2}
s_add_u32 s{T1}, s{T1}, {WQP}
s_add_u32 s{T2}, s{T1}, 32768
s_add_u32 s{T3}, s{T1}, 65536
buffer_store_dwordx4 v[208:211], v{vl16}, {sr(sWS,4)}, s{T1} offen sc1
buffer_store_dwordx4 v[212:215], v{vl16}, {sr(sWS,4)}, s{T2} offen sc1
s_cmp_gt_u32 s{T0}, 25
s_cbranch_scc1 {lab}
buffer_store_dwordx4 v[216:219], v{vl16}, {sr(sWS,4)}, s{T3} offen sc1
{lab}:""")
def phase1(a):
    RD=14
    vm=VM(a)
    a.c("==== L0-only startup: fragment-major copy + stats of input tile")
    frag_addr(a,X2)
    stamp(a,26)
    a.e(f"""s_waitcnt vmcnt({9+2*int(os.environ.get("PF","0"))})
v_readfirstlane_b32 s{sTag}, v{vTAG}
s_mul_i32 s{sTag}, s{sTag}, 1664525
s_add_u32 s{sTag}, s{sTag}, 1013904223
v_mov_b32 v{vTAG}, s{sTag}""")
    stamp(a,27)
    x_store(a,sWS)
    tile_stats(a,16,40,41,42)
    stat_addr(a,43,None)
    a.e(f"""s_lshl_b32 s{T0}, s{sDT}, 3
s_add_u32 s{T1}, s{T0}, {XSTAT}
s_add_u32 s{T2}, s{T0}, {STAT}
s_add_u32 s{T3}, s{T0}, {STAT+STAT_L}
v_mov_b32 v44, -1
v_mov_b32 v45, -1
s_mov_b64 exec, 0xffff
buffer_store_dwordx2 v[40:41], v43, {sr(sWS,4)}, s{T1} offen sc1
buffer_store_dwordx2 v[44:45], v43, {sr(sWS,4)}, s{T2} offen sc1
buffer_store_dwordx2 v[44:45], v43, {sr(sWS,4)}, s{T3} offen sc1
s_mov_b64 exec, -1""")
    if EV("SB"): wq_block(a,224,1)
    x_addrs(a)
    sync_begin(a,9 if EV("SB") else 0,10)
    if EV("TLB","0"):
        a.e(f"v_lshlrev_b32 v4, 19, v{vL}\nv_lshlrev_b32 v5, 17, v{vL}\nbuffer_load_dword v8, v4, {sr(sWS,4)}, 0 offen\nv_add_u32 v4, 0x2000000, v4\nbuffer_load_dword v8, v4, {sr(sWS,4)}, 0 offen")
        for srd in (sW1,sW2,sWO,sOUT): a.e(f"buffer_load_dword v8, v5, {sr(srd,4)}, 0 offen")
    if not EV("SB"): wq_block(a,224,1)
    stamp(a,30)
    wq_block(a,224,2,half=True)
    a.e(f"s_waitcnt vmcnt(0) lgkmcnt(0)\ns_barrier")
    stamp(a,1)
    a.e("L_layer:")
    stamp(a,2)
    a.c("==== cw pass")
    C={0:([48,64,56,72],[80,32,96,104]),1:([0,16,8,24],[112,120,128,136])}
    pk=lambda l: sum(x<<(8*i) for i,x in enumerate(l))
    a.e(f"""v_lshrrev_b32 v8, 5, v{vL}
v_bfe_u32 v9, v{vL}, 2, 2
v_lshl_add_u32 v8, v8, 3, v9
v_mul_u32_u24 v8, 144, v8
v_and_b32 v9, 3, v{vL}
v_lshlrev_b32 v9, 3, v9
v_and_b32 v10, 16, v{vL}
v_cmp_eq_u32 vcc, 0, v10""")
    for T in range(2):
        a.e(f"""v_mov_b32 v10, 0x{pk(C[T][1]):x}
v_mov_b32 v11, 0x{pk(C[T][0]):x}
v_cndmask_b32 v10, v10, v11, vcc
v_lshrrev_b32 v10, v9, v10
v_and_b32 v10, 0xff, v10
v_add_u32 v{4+T}, v8, v10
v_add_u32 v{6+T}, {20*16*144}, v{4+T}""")
    a.e(f"""s_lshl_b32 s{T0}, s{sWave}, 8
s_add_u32 s{T0}, s{T0}, {CWT}
v_lshrrev_b32 v8, 5, v{vL}
v_lshlrev_b32 v8, 4, v8
v_add_u32 v8, s{T0}, v8
v_lshlrev_b32 v9, 2, v{vL}
v_add_u32 v9, s{T0}, v9""")
    lab=a.label("NOCW"); lab2=a.label("CWDONE")
    a.e(f"s_cmp_lg_u32 s{sL}, 0\ns_cbranch_scc1 {lab}")
    for i in range(4): a.e(f"v_mov_b32 v{12+i}, 0x3f803f80")
    a.e(f"s_mul_i32 s{T1}, s{sWave}, {10*16*144}\nv_add_u32 v60, s{T1}, v4\nv_add_u32 v61, s{T1}, v5")
    for t in range(10):
        for T in range(2):
            for u in range(2): a.e(f"ds_read_b64_tr_b16 {vr(96+t*8+T*4+u*2,2)}, v{60+T} offset:{(16*t+4*u)*144}")
        if t==3: a.e("s_waitcnt lgkmcnt(8)")
        if t>=3:
            if t>3: a.e("s_waitcnt lgkmcnt(12)")
            for T in range(2): a.e(m32(16+16*T,96+(t-3)*8+T*4,12,"0" if t==3 else None))
    a.e("s_waitcnt lgkmcnt(0)")
    for t in range(7,10):
        for T in range(2): a.e(m32(16+16*T,96+t*8+T*4,12))
    a.e(f"""s_nop 7
v_subrev_u32 v62, {CWT-VS}, v8
v_lshlrev_b32 v63, 2, v{vL}
s_mov_b32 s{sE}, 1
s_mov_b32 s{sE+1}, 1
s_mov_b64 exec, s[{sE}:{sE+1}]""")
    for q in range(8): a.e(f"ds_write_b128 v62, {vr(16+4*q,4)} offset:{32*q}")
    a.e(f"""s_mov_b64 exec, -1
v_add_u32 v63, {VS}, v63
s_waitcnt lgkmcnt(0)
s_barrier
ds_read_b32 v64, v63
ds_read_b32 v65, v63 offset:256
ds_read_b32 v66, v63 offset:512
ds_read_b32 v67, v63 offset:768
s_waitcnt lgkmcnt(0)
v_add_f32 v64, v64, v65
v_add_f32 v66, v66, v67
v_add_f32 v{vCW}, v64, v66
{lab}:
v_mov_b32 v11, v9""")
    stamp(a,3)
    a.e(f"""s_lshl_b32 s{T0}, s{sQB}, 2
s_add_u32 s{T0}, s{T0}, s{sWave}
s_mul_i32 s{sCur}, s{T0}, {80*1024}
s_mul_i32 s{T1}, s{sL}, {XB_L}
s_add_u32 s{sCur}, s{sCur}, s{T1}
s_add_u32 s{sCur}, s{sCur}, {X2}
v_lshlrev_b32 v2, 4, v{vL}
v_add_u32 v3, 40960, v2
s_lshl_b32 s{T5}, s{T0}, 12
s_mul_i32 s{T0}, s{sL}, {STAT_L}
s_add_u32 s{T5}, s{T5}, s{T0}
s_add_u32 s{T5}, s{T5}, {XSTAT}
v_and_b32 v9, 31, v{vL}
v_lshlrev_b32 v9, 6, v9
v_and_b32 v10, 32, v{vL}
v_add_u32 v9, v9, v10""")
    a.e("s_waitcnt vmcnt(0)")
    sync_end(a)
    vm.clear(); x_prologue(a,vm,RD)
    a.e(f"ds_write_b32 v11, v{vCW}")
    wq_read(a,0,0)
    stamp(a,4)
    a.c("==== P1 main loop")
    for t in range(40):
        if t+1<40: wq_read(a,t+1,(t+1)%2)
        vm.wait(("x",t))
        a.e(f"s_waitcnt lgkmcnt({4 if t+1<40 else 0})")
        r=96+(t%RD)*8
        for T in range(2):
            for k in range(2):
                a.e(m32(16+32*k+16*T,80+(t%2)*8+T*4,r+4*k,"0" if t==0 else None))
        if t+RD<40: x_load(a,vm,t+RD,RD)
        if t==26:
            for k in range(2):
                for i in range(2):
                    a.e(f"buffer_load_dwordx4 {vr(208+8*k+4*i,4)}, v9, {sr(sWS,4)}, s{T5} offen offset:{2048*k+16*i}"); vm.issue("st")
    stamp(a,5)
    a.c("==== P1 epilogue")
    for q in range(8): a.e(f"ds_read_b128 {vr(96+4*q,4)}, v8 offset:{32*q}")
    vm.wait("st")
    cq=math.log2(math.e)/math.sqrt(20.0)
    a.e(f"s_mov_b32 s{T0}, 0x{f2u(1/640):x}\ns_mov_b32 s{T1}, 0x{f2u(1e-5):x}\ns_mov_b32 s{T2}, 0x{f2u(cq):x}")
    a.e(f"v_mov_b32 v11, s{T2}\nv_cmp_gt_u32 vcc, 32, v{vL}\ns_nop 1\nv_cndmask_b32 v11, v11, 1.0, vcc")
    for k in range(2):
        b=208+8*k; S=224+8*k
        a.e(f"""v_add_f32 v{b}, v{b}, v{b+2}
v_add_f32 v{b+1}, v{b+1}, v{b+3}
v_add_f32 v{b+4}, v{b+4}, v{b+6}
v_add_f32 v{b+5}, v{b+5}, v{b+7}
v_add_f32 v{b}, v{b}, v{b+4}
v_add_f32 v{b+1}, v{b+1}, v{b+5}""")
        xsum(a,b,b+2,(32,)); xsum(a,b+1,b+2,(32,))
        a.e(f"""v_mul_f32 v{b}, s{T0}, v{b}
v_mul_f32 v{b+1}, s{T0}, v{b+1}
v_fma_f32 v{b+1}, -v{b}, v{b}, v{b+1}
v_max_f32 v{b+1}, 0, v{b+1}
v_add_f32 v{b+1}, s{T1}, v{b+1}
v_rsq_f32 v{S+2}, v{b+1}
v_sub_f32 v{S}, 0, v{b}
v_mul_f32 v{S+4}, s{T2}, v{S+2}
v_mul_f32 v{S+6}, v11, v{S+2}""")
    a.e("s_waitcnt lgkmcnt(0)")
    for k in range(2):
        S=224+8*k
        for T in range(2):
            for q in range(4):
                A=16+32*k+16*T+4*q; W=96+16*T+4*q
                sc = S+2
                if T==1 and q<2: sc=S+4
                if T==0 and q==2: sc=S+6
                for p in range(2):
                    a.e(f"v_pk_fma_f32 {vr(A+2*p,2)}, {vr(W+2*p,2)}, {vr(S,2)}, {vr(A+2*p,2)} op_sel_hi:[1,0,1]")
                for p in range(2):
                    a.e(f"v_pk_mul_f32 {vr(A+2*p,2)}, {vr(A+2*p,2)}, {vr(sc,2)} op_sel_hi:[1,0]")
                dst={(0,0):128+4*k,(0,1):130+4*k,(0,2):176+2*k,(0,3):136+6*k,(1,0):168+4*k,(1,1):170+4*k,(1,2):138+6*k,(1,3):140+6*k}[(T,q)]
                for p in range(2):
                    a.e(f"v_cvt_pk_bf16_f32 v{dst+p}, v{A+2*p}, v{A+2*p+1}")
        a.e(f"v_mov_b32 v12, 0x3f803f80\nv_cndmask_b32 v{140+6*k}, v12, v{140+6*k}, vcc\nv_cndmask_b32 v{141+6*k}, v12, v{141+6*k}, vcc")
    a.e(f"""s_mul_i32 s{sKV}, s{sL}, {KV_L}
s_mul_i32 s{T0}, s{sH}, {8*CH}
s_add_u32 s{sKV}, s{sKV}, s{T0}
s_add_u32 s{sKV}, s{sKV}, {KV}
s_mul_i32 s{T0}, s{sQB}, {CH}
s_add_u32 s{T0}, s{T0}, s{sKV}
s_mul_i32 s{T1}, s{sWave}, 3072
s_add_u32 s{T1}, s{T1}, {VS}
v_and_b32 v2, 31, v{vL}
v_lshrrev_b32 v3, 5, v{vL}
v_mul_u32_u24 v4, 48, v2
v_lshl_add_u32 v4, v3, 3, v4
v_add_u32 v4, s{T1}, v4""")
    for k in range(2):
        for i in range(3): a.e(f"ds_write_b64 v4, {vr(136+6*k+2*i,2)} offset:{1536*k+16*i}")
    a.e(f"""s_lshl_b32 s{T2}, s{sWave}, 11
v_lshlrev_b32 v5, 4, v{vL}
v_add_u32 v5, s{T2}, v5
v_add_u32 v6, {RING}, v5
v_bfe_u32 v7, v{vL}, 2, 2
v_lshl_add_u32 v7, v3, 2, v7
v_mul_u32_u24 v7, 48, v7
v_and_b32 v8, 16, v{vL}
v_lshl_add_u32 v7, v8, 1, v7
v_and_b32 v8, 3, v{vL}
v_lshl_add_u32 v7, v8, 3, v7
v_add_u32 v7, s{T1}, v7""")
    for k in range(2):
        a.e(f"buffer_store_dwordx4 {vr(128+4*k,4)}, v5, {sr(sWS,4)}, s{T0} offen offset:{1024*k} sc1\nds_write_b128 v6, {vr(128+4*k,4)} offset:{1024*k}")
    a.e(f"""s_lshl_b32 s{T2}, s{sWave}, 9
s_add_u32 s{T2}, s{T2}, 8192
v_lshlrev_b32 v5, 4, v{vL}
v_add_u32 v5, s{T2}, v5
v_add_u32 v6, {RING}, v5
s_mov_b32 s{sE}, -1
s_mov_b32 s{sE+1}, 0
s_mov_b64 exec, s[{sE}:{sE+1}]
buffer_store_dwordx4 v[176:179], v5, {sr(sWS,4)}, s{T0} offen sc1
ds_write_b128 v6, v[176:179]
s_mov_b64 exec, -1
s_waitcnt lgkmcnt(0)""")
    for k in range(2):
        for t in range(2):
            for u in range(2):
                a.e(f"ds_read_b64_tr_b16 {vr(144+8*k+4*t+2*u,2)}, v7 offset:{1536*k+(16*t+8*u)*48}")
    a.e(f"""v_permlane32_swap_b32 v176, v178
v_permlane32_swap_b32 v177, v179
s_mul_i32 s{T2}, s{sWave}, {4*672}
s_add_u32 s{T2}, s{T2}, 10240
v_mul_u32_u24 v5, 336, v3
v_lshl_add_u32 v5, v2, 4, v5
v_add_u32 v5, s{T2}, v5
v_add_u32 v6, {RING}, v5
s_mov_b32 s{sE}, 0x1fffff
s_mov_b32 s{sE+1}, 0x1fffff
s_waitcnt lgkmcnt(0)
s_mov_b64 exec, s[{sE}:{sE+1}]""")
    for k in range(2):
        for t in range(2):
            o=(2*k+t)*672
            a.e(f"buffer_store_dwordx4 {vr(144+8*k+4*t,4)}, v5, {sr(sWS,4)}, s{T0} offen offset:{o} sc1\nds_write_b128 v6, {vr(144+8*k+4*t,4)} offset:{o}")
    a.e("s_mov_b64 exec, -1\ns_waitcnt lgkmcnt(0)")
    a.e(f"""s_lshl_b32 s{T0}, s{sQB}, 2
s_add_u32 s{T0}, s{T0}, s{sWave}
s_lshl_b32 s{T1}, s{T0}, 10
v_lshlrev_b32 v10, 4, v{vL}
v_add_u32 v11, s{T1}, v10
ds_read_b128 v[208:211], v11
ds_read_b128 v[212:215], v11 offset:32768
v_add_u32 v11, 65536, v11
ds_read_b128 v[216:219], v11
s_waitcnt lgkmcnt(0)""")
    stamp(a,6)
    a.e("s_barrier")
    stamp(a,7)
```

```python
from gen1 import *
SA,SB,OA,OBr,PP=16,48,80,96,112
KM=(128,132); KR=(136,140); VV=(144,152,160); QA,QB,QR=168,172,178
aK,aR,aV=180,181,182
WOA=188
vDMA=193
def m2b(d,a,b,c="0"): return f"v_mfma_f32_32x32x4_2b_bf16 {vr(d,32)}, {vr(a,2)}, {vr(b,2)}, {c}"
def vbuf(i): return VV[2] if i%8==7 else VV[i%2]
def rdK(i):
    n=3 if i>=8 else 0
    return f"ds_read_b128 {vr(KM[i%2],4)}, v{aK+n} offset:{(i%8)*1024}"
def rdR(p):
    n=3 if p>=4 else 0
    return f"ds_read_b128 {vr(KR[p%2],4)}, v{aR+n} offset:{(p%4)*512}"
def rdV(i):
    n=3 if i>=8 else 0
    return [f"ds_read_b128 {vr(vbuf(i)+4*t,4)}, v{aV+n} offset:{(i%8)*1344+672*t}" for t in range(2)]
def krem(i): return KR[(i//2)%2]+2*(i%2)

def attn_iter(a,i,first=False,cinit="0",ex=None):
    S=SA if i%2==0 else SB; N=SB if i%2==0 else SA
    v=[]
    for h in range(2):
        b=S+16*h
        for e in range(16):
            v.append(f"v_exp_f32 v{b+e}, v{b+e}")
            if e%2==1 and e>=3: v.append(f"v_cvt_pk_bf16_f32 v{PP+8*h+(e-3)//2}, v{b+e-3}, v{b+e-2}")
        v.append(("late",f"v_cvt_pk_bf16_f32 v{PP+8*h+7}, v{b+14}, v{b+15}"))
    seq=[]; pend=None
    for x in v:
        if isinstance(x,tuple): pend=x[1]; continue
        seq.append(x)
        if pend: seq.append(pend); pend=None
    extra={}
    def at(p,s): extra.setdefault(p,[]).append(s)
    pv=vbuf(i-1); cv=vbuf(i)
    at(0,m2b(N,krem(i+1),QR,cinit))
    if not first:
        at(8,m32(OBr,pv,PP+8,"0" if first=="second" else None)); at(14,m32(OBr,pv+4,PP+12))
    at(21,m32(N,KM[(i+1)%2],QA))
    at(27,m32(OA,cv,PP,"0" if first else None))
    at(34,m32(N+16,KM[(i+1)%2],QB))
    at(40,m32(OA,cv+4,PP+4))
    at(2,rdK(i+2))
    if i%2==0: at(5,rdR(i//2+1))
    if i!=6:
        for n,x in enumerate(rdV(i+1)): at(16+3*n,x)
    if i==5:
        for n,x in enumerate(rdV(7)): at(23+6*n,x)
    if ex:
        for p,l in ex.items():
            for y in l: at(p,y)
    for p,x in enumerate(seq):
        for y in extra.get(p,[]):
            if callable(y): y()
            else: a.e(y)
        a.e(x)
    a.e("s_waitcnt lgkmcnt(0)")
    a.e(pend)

sKVW,sLW=92,93
def kv_dma(a, schunk, slot_s):
    a.e(f"""s_mul_i32 s{T0}, s{schunk}, {CH}
s_add_u32 m0, s{sLW}, s{slot_s}
s_add_u32 s{T0}, s{T0}, s{sKVW}""")
    for n in range(4): a.e(f"buffer_load_dwordx4 v{vDMA}, {sr(sWS,4)}, s{T0} offen offset:{1024*n} lds")
    a.e(f"s_add_u32 m0, m0, 3328\ns_add_u32 s{T0}, s{T0}, 3328")
    for n in range(2): a.e(f"buffer_load_dwordx4 v{vDMA}, {sr(sWS,4)}, s{T0} offen offset:{1024*n} lds")

W1A=10; W1R=14; sWOB,sW1B,sW1L=94,T5,96
def w1_setup(a):
    a.e(f"""v_lshrrev_b32 v2, 3, v{vL}
v_mul_u32_u24 v2, 3072, v2
v_bfe_u32 v3, v{vL}, 4, 1
v_lshlrev_b32 v3, 2, v3
v_and_b32 v4, 7, v{vL}
v_xor_b32 v3, v3, v4
v_lshl_add_u32 v{W1A}, v3, 4, v2
v_add_u32 v{W1A+1}, {24576-1024}, v{W1A}
v_add_u32 v{W1A+2}, {2*(24576-1024)}, v{W1A}
v_add_u32 v{W1A+3}, {3*(24576-1024)}, v{W1A}
s_mul_i32 s{sW1B}, s{sWave}, {512*3072}
s_lshl_b32 s{T1}, s{sFT}, 7
s_add_u32 s{sW1B}, s{sW1B}, s{T1}
s_mul_i32 s{sW1L}, s{sWave}, 15360
s_add_u32 s{sW1L}, s{sW1L}, {RING}
v_lshrrev_b32 v3, 5, v{vL}
v_bfe_u32 v4, v{vL}, 2, 2
v_lshl_add_u32 v3, v3, 3, v4
v_lshlrev_b32 v3, 7, v3
v_add_u32 v3, s{sW1L}, v3
v_and_b32 v4, 1, v{vL}
v_lshl_add_u32 v3, v4, 3, v3
v_bfe_u32 v4, v{vL}, 1, 1
v_lshl_add_u32 v3, v4, 4, v3
v_bfe_u32 v4, v{vL}, 4, 1
v_lshl_add_u32 v3, v4, 5, v3
v_bfe_u32 v4, v{vL}, 3, 1
s_lshr_b32 s{T2}, s{sWave}, 1
v_xor_b32 v4, s{T2}, v4
v_lshl_add_u32 v{W1R}, v4, 6, v3
v_xor_b32 v4, 1, v4
v_lshl_add_u32 v{W1R+1}, v4, 6, v3""")
sC,sSlotC,sSlotN,sNext=85,86,87,88
sKC,sW1F,sEv=97,98,95
sKM,sKA,sKB,sWM,sWA,sPF=72,73,74,75,76,77
vPF=200; vJ=202; vKP=204
def w1_load(a):
    lab=a.label("NOW1")
    a.e(f"s_cmp_eq_u32 s{sW1F}, 0\ns_cbranch_scc1 {lab}")
    w1_setup(a)
    vm=VM(a); NS=7
    def dma(st):
        a.e(f"s_add_u32 m0, s{sW1L}, {(st%NS)*2048}\ns_add_u32 s{T2}, s{sW1B}, {16*st*3072}")
        for k in range(2): a.e(f"buffer_load_dwordx4 v{W1A+k}, {sr(sW1,4)}, s{T2} offen offset:{1024*k} lds"); vm.issue(st)
    for st in range(NS): dma(st)
    for st in range(32):
        vm.wait(st)
        for e in range(2):
            for u in range(2):
                a.e(f"ds_read_b64_tr_b16 {ar((st*2+e)*4+2*u,2)}, v{W1R+e} offset:{(st%NS)*2048+4*u*128}")
        if st>=1 and st-1+NS<32: a.e("s_waitcnt lgkmcnt(4)"); dma(st-1+NS)
    a.e(f"{lab}:")

def slow(a):
    mA,mB=200,201; sP,sT,sB=72,73,74
    a.e(f"""L_slow:
v_and_b32 v10, 31, v{vL}
v_lshlrev_b32 v11, 4, v10
v_add_u32 v11, 8192, v11
v_min_u32 v10, 20, v10
v_lshrrev_b32 v12, 5, v{vL}
v_mul_u32_u24 v12, 336, v12
v_lshl_add_u32 v12, v10, 4, v12
v_add_u32 v12, 10240, v12
v_mov_b32 v{mA}, 0xff800000
v_mov_b32 v{mB}, 0xff800000
s_mov_b32 s{sP}, 0""")
    for r in range(32): a.e(f"v_mov_b32 v{OA+r}, 0")
    a.e(f"""L_sl_pass:
s_mov_b32 s{sT}, 0
L_sl_tile:
s_lshr_b32 s{sB}, s{sT}, 3
s_mul_i32 s{sB}, s{sB}, {CH}
s_add_u32 s{sB}, s{sB}, s{sKV}
s_and_b32 s75, s{sT}, 7
s_lshl_b32 s76, s75, 10
s_add_u32 s76, s76, s{sB}
buffer_load_dwordx4 v[128:131], v{vDMA}, {sr(sWS,4)}, s76 offen
s_lshr_b32 s76, s75, 1
s_lshl_b32 s76, s76, 9
s_and_b32 s77, s75, 1
s_lshl_b32 s77, s77, 3
s_add_u32 s76, s76, s77
s_add_u32 s76, s76, s{sB}
buffer_load_dwordx2 v[136:137], v11, {sr(sWS,4)}, s76 offen
s_mul_i32 s76, s75, 1344
s_add_u32 s76, s76, s{sB}
buffer_load_dwordx4 v[144:147], v12, {sr(sWS,4)}, s76 offen
buffer_load_dwordx4 v[148:151], v12, {sr(sWS,4)}, s76 offen offset:672
s_waitcnt vmcnt(0)""")
    a.e(m2b(SA,136,QR)); a.e("s_nop 15\ns_nop 3")
    a.e(m32(SA,128,QA)); a.e(m32(SA+16,128,QB)); a.e("s_nop 15")
    a.e(f"s_cmp_lg_u32 s{sP}, 0\ns_cbranch_scc1 L_sl_p2")
    for h,m in ((0,mA),(1,mB)):
        for e in range(0,16,2): a.e(f"v_max3_f32 v{m}, v{m}, v{SA+16*h+e}, v{SA+16*h+e+1}")
    a.e("s_branch L_sl_next\nL_sl_p2:")
    for h,m in ((0,mA),(1,mB)):
        for e in range(16): a.e(f"v_sub_f32 v{SA+16*h+e}, v{SA+16*h+e}, v{m}")
    for e in range(32): a.e(f"v_exp_f32 v{SA+e}, v{SA+e}")
    a.e("s_nop 0")
    for e in range(16): a.e(f"v_cvt_pk_bf16_f32 v{PP+e}, v{SA+2*e}, v{SA+2*e+1}")
    a.e("s_nop 1")
    a.e(m32(OA,144,PP)); a.e(m32(OBr,144,PP+8)); a.e(m32(OA,148,PP+4)); a.e(m32(OBr,148,PP+12))
    a.e(f"""s_nop 15
L_sl_next:
s_add_u32 s{sT}, s{sT}, 1
s_cmp_lt_u32 s{sT}, 64
s_cbranch_scc1 L_sl_tile
s_cmp_lg_u32 s{sP}, 0
s_cbranch_scc1 L_slow_ret""")
    for m in (mA,mB):
        a.e(f"v_mov_b32 v202, v{m}\ns_nop 1\nv_permlane32_swap_b32 v{m}, v202\nv_max_f32 v{m}, v{m}, v202")
    a.e(f"s_mov_b32 s{sP}, 1\ns_branch L_sl_pass")

def attention(a):
    a.c("==== attention")
    a.e(f"""v_lshlrev_b32 v{vDMA}, 4, v{vL}
v_add_u32 v{aK}, {RING}, v{vDMA}
v_and_b32 v2, 31, v{vL}
v_lshlrev_b32 v{aR}, 4, v2
v_add_u32 v{aR}, {RING+8192}, v{aR}
v_min_u32 v2, 20, v2
v_lshrrev_b32 v3, 5, v{vL}
v_mul_u32_u24 v3, 336, v3
v_lshl_add_u32 v{aV}, v2, 4, v3
v_add_u32 v{aV}, {RING+10240}, v{aV}""")
    for r in (aK,aR,aV): a.e(f"v_add_u32 v{r+3}, {CH}, v{r}")
    a.e(rdK(0)); a.e(rdK(1)); a.e(rdR(0))
    for x in rdV(0): a.e(x)
    for i in range(5):
        a.e(f"""v_add_u32 v2, {64*i}, v{vL}
v_mul_u32_u24 v3, 6554, v2
v_lshrrev_b32 v3, 16, v3
v_lshlrev_b32 v2, 4, v2
v_mul_u32_u24 v3, 1120, v3
v_add_u32 v{WOA+i}, v2, v3""")
        if 0<i<4: a.e(f"v_subrev_u32 v{WOA+i}, {1024*i}, v{WOA+i}")
    a.e(f"""s_mov_b32 s{sC}, 0
s_mov_b32 s{sSlotC}, {RING}
s_mov_b32 s{sSlotN}, {RING+CH}
s_mul_i32 s{sLW}, s{sWave}, 5376
s_add_u32 s{sKVW}, s{sKV}, s{sLW}
s_mul_i32 s{sWOB}, s{sDT}, 160
s_mul_i32 s{T0}, s{sWave}, {5*32*1280}
s_add_u32 s{sWOB}, s{sWOB}, s{T0}
s_mov_b32 s{sWA}, s{sWOB}
s_add_u32 s{sNext}, s{sQB}, 1
s_and_b32 s{sNext}, s{sNext}, 7
s_waitcnt lgkmcnt(0)""")
    a.e(m2b(SA,krem(0),QR))
    a.e(f"s_mul_i32 s{sW1L}, s{sWave}, 25600\ns_mov_b32 s{sWM}, s{sW1L}")
    flag_off(a,sKC,KF,((sH,7),))
    flag_off(a,T6,KF,((sH,7),(sQB,4),(sWave,2)))
    lane32x4(a,vKP)
    a.e("s_nop 2"); a.e(m32(SA,KM[0],QA)); a.e(m32(SA+16,KM[0],QB))
    for r in range(16): a.e(f"v_mov_b32 v{OBr+r}, 0")
    a.e(f"""s_and_b32 s{T0}, s{sDT}, 3
s_lshl_b32 s{T0}, s{T0}, 2
s_add_u32 s{T0}, s{T0}, s{sWave}
s_mul_i32 s{T0}, s{T0}, {96*4096}
s_lshl_b32 s{sPF}, s{sRB}, 7
s_add_u32 s{sPF}, s{sPF}, s{T0}
v_lshlrev_b32 v{vPF+1}, 12, v{vL}
v_add_u32 v{vPF+1}, s{sPF}, v{vPF+1}
s_xor_b32 s{sW1F}, s{sL}, 1
s_and_b32 s{sW1F}, s{sW1F}, s{sG1}
s_mul_i32 s{T0}, s{sDT1}, 13
s_lshr_b32 s{T0}, s{T0}, 6
s_mul_i32 s{T0}, s{T0}, 5
s_sub_u32 s{T0}, s{sDT1}, s{T0}
s_lshl_b32 s{T0}, s{T0}, 2
s_add_u32 s{T0}, s{T0}, s{sWave}
s_mul_i32 s{T0}, s{T0}, 104
s_lshl_b32 s{T1}, s{sFT}, 7
v_add_u32 v{vPF}, s{T0}, v{vL}
v_mul_u32_u24 v{vPF}, 3072, v{vPF}
v_add_u32 v{vPF}, s{T1}, v{vPF}
s_mov_b32 s{sPA}, s{sW1}
s_mov_b32 s{sPA+1}, s{sW1+1}
s_mov_b32 s{sPA+2}, s{sW1+2}
s_mov_b32 s{sPA+3}, s{sW1+3}
s_mov_b32 s{sEv}, 2
s_cmp_lg_u32 s{sW1F}, 0
s_cbranch_scc1 L_pfw1
v_mov_b32 v{vPF}, v{vPF+1}
s_mov_b32 s{sPA}, s{sW2}
s_mov_b32 s{sPA+1}, s{sW2+1}
s_mov_b32 s{sEv}, 6
L_pfw1:""")
    def kvp(p):
        so=sKB if p==2 else sKA
        o=(0,2048,0)[p]
        return [f"s_add_u32 m0, s{sKM}, {3328 if p==2 else 0}"]+[f"buffer_load_dwordx4 v{vDMA}, {sr(sWS,4)}, s{so} offen offset:{o+1024*n} lds" for n in range(2)]
    def wop(n):
        return [f"s_add_u32 m0, s{sWM}, {4096 if n==4 else 0}", f"buffer_load_dwordx4 v{WOA+n}, {sr(sWO,4)}, s{sWA} offen offset:{1024*(n%4)} lds"]
    def common_ex(i,vm,wo=True,pf=True):
        ex={}
        def put(l,tag,slots=(8,14)):
            k=0
            for y in l:
                if y.startswith("buffer"): ex.setdefault(slots[k],[]).extend([y,lambda t=tag: vm.issue(t)]); k+=1
                else: ex.setdefault(slots[k]-1,[]).append(y)
        if i in (6,7,0): put(kvp({6:0,7:1,0:2}[i]),"kv")
        if pf and i==1: put([f"buffer_load_dword v{vJ}, v{vPF}, {sr(sPA,4)}, 0 offen"],"pf")
        if wo and i in (3,4): put(wop(2*(i-3))+wop(2*(i-3)+1),"wo")
        if wo and i==5: put(wop(4),"wo")
        return ex
    def boundary(first,vm):
        if first:
            stamp(a,8)
            lab=a.label("KVOK")
            a.e(f"s_waitcnt vmcnt(0)\nv_cmp_ne_u32 vcc, s{sTag}, v1\ns_cbranch_vccz {lab}")
            flag_wait(a,vKP,sKC)
            a.e(f"{lab}:")
            stamp(a,9)
            kv_dma(a,sNext,sSlotN); vm.clear(); vm.issue("kv")
        a.e(f"""s_add_u32 s{sNext}, s{sNext}, 1
s_and_b32 s{sNext}, s{sNext}, 7
s_mul_i32 s{sKA}, s{sNext}, {CH}
s_add_u32 s{sKA}, s{sKA}, s{sKVW}
s_add_u32 s{sKB}, s{sKA}, 3328
s_add_u32 s{sKM}, s{sLW}, s{sSlotC}""")
        vm.wait("kv"); a.e("s_barrier")
        if first: stamp(a,10); cstamp(a,28); wqp_store(a,vDMA)
    def endchunk(wo):
        for r in (aK,aR,aV): a.e(f"v_swap_b32 v{r}, v{r+3}")
        a.e(f"s_mov_b32 s{T0}, s{sSlotC}\ns_mov_b32 s{sSlotC}, s{sSlotN}\ns_mov_b32 s{sSlotN}, s{T0}\ns_add_u32 s{sC}, s{sC}, 1")
        if wo: a.e(f"""s_max_u32 s{T0}, s{sC}, 3
s_sub_u32 s{T0}, s{T0}, 3
s_mul_i32 s{T1}, s{T0}, 5120
s_add_u32 s{sWM}, s{sW1L}, s{T1}
s_mul_i32 s{T1}, s{T0}, {32*1280}
s_add_u32 s{sWA}, s{sWOB}, s{T1}""")
    def chunk0(vm,exf):
        for i in range(8):
            if i==3: a.e("s_waitcnt vmcnt(0)"); flag_set(a,T6)
            if i==5: a.e(f"buffer_load_dword v1, v{vKP}, {sr(sWS,4)}, s{sKC} offen sc1")
            if i==6: boundary(True,vm)
            ex=common_ex(i,vm,False,False) if i>=6 else {}
            if exf: exf(i,ex)
            attn_iter(a,i,first=(i==0),ex=ex)
    vm=VM(a)
    chunk0(vm,None); endchunk(True)
    a.e(".p2align 6\nL_attn_loop:")
    vm=VM(a); vm.q=["kv"]*4
    for i in range(8):
        if i==6: boundary(False,vm)
        attn_iter(a,i,ex=common_ex(i,vm))
    endchunk(True)
    a.e(f"s_cmp_eq_u32 s{sC}, s{sEv}\ns_cbranch_scc1 L_ev\ns_cmp_lt_u32 s{sC}, 8\ns_cbranch_scc1 L_attn_loop")
    def tails():
        a.e(f"""L_ev:
s_cmp_eq_u32 s{sC}, 2
s_cbranch_scc0 L_ev5
v_add_u32 v{vPF}, {40*3072}, v{vPF}
s_mov_b32 s{sEv}, 5
s_branch L_attn_loop
L_ev5:
s_cmp_eq_u32 s{sC}, 5
s_cbranch_scc0 L_ev6
v_mov_b32 v{vPF}, v{vPF+1}
s_mov_b32 s{sPA}, s{sW2}
s_mov_b32 s{sPA+1}, s{sW2+1}
s_mov_b32 s{sEv}, 6
s_branch L_attn_loop
L_ev6:
v_add_u32 v{vPF}, {32*4096}, v{vPF}
s_branch L_attn_loop""")
        slow(a)
    global attn_tails
    attn_tails=tails
    a.e("s_nop 0"); a.e(m32(OBr,VV[2],PP+8)); a.e(m32(OBr,VV[2]+4,PP+12))
    a.e("L_attn_fin:")
    stamp(a,11); cstamp(a,29)
    a.c("O store addresses")
    a.e(f"""s_mul_i32 s{T0}, s{sL}, {XB_L}
s_add_u32 s{T0}, s{T0}, {OB}
s_lshl_b32 s{T1}, s{sQB}, 2
s_add_u32 s{T1}, s{T1}, s{sWave}
s_mul_i32 s{T1}, s{T1}, {4*20480}
s_add_u32 s{T0}, s{T0}, s{T1}
s_lshr_b32 s{T1}, s{sH}, 1
s_lshl_b32 s{T1}, s{T1}, 10
s_and_b32 s{T2}, s{sH}, 1
s_lshl_b32 s{T3}, s{T2}, 9
s_add_u32 s{T1}, s{T1}, s{T3}
s_add_u32 s{T1}, s{T1}, s{T0}
s_lshr_b32 s{T3}, s{sH}, 3
s_lshl_b32 s{T3}, s{T3}, 10
s_bfe_u32 s{T4}, s{sH}, 0x20001
s_lshl_b32 s{T4}, s{T4}, 7
s_add_u32 s{T3}, s{T3}, s{T4}
s_lshl_b32 s{T2}, s{T2}, 9
s_add_u32 s{T3}, s{T3}, s{T2}
s_add_u32 s{T3}, s{T3}, {16*1024}
s_add_u32 s{T3}, s{T3}, s{T0}
s_add_u32 s{T2}, s{T1}, 40960
v_bfe_u32 v2, v{vL}, 4, 1
v_mul_u32_u24 v2, 20480, v2
v_and_b32 v3, 15, v{vL}
v_lshl_add_u32 v5, v3, 3, v2
v_lshl_add_u32 v2, v3, 4, v2
v_lshrrev_b32 v3, 5, v{vL}
v_lshl_add_u32 v4, v3, 8, v2
v_mul_u32_u24 v3, 40960, v3
v_add_u32 v5, v3, v5
s_mov_b32 s{T4}, 0x{f2u(2.0**-60):x}
s_mov_b32 s{T5}, 0x{f2u(2.0**60):x}""")
    a.c("range check of the row sums: outside [2^-60,2^60] (or NaN) the zero stand-in for the max is unsafe")
    a.e(f"""v_cmp_nge_f32 vcc, v{OA+12}, s{T4}
v_cmp_nle_f32 s[{sE}:{sE+1}], v{OA+12}, s{T5}
s_or_b64 vcc, vcc, s[{sE}:{sE+1}]
v_cmp_nge_f32 s[{sE}:{sE+1}], v{OBr+12}, s{T4}
s_or_b64 vcc, vcc, s[{sE}:{sE+1}]
v_cmp_nle_f32 s[{sE}:{sE+1}], v{OBr+12}, s{T5}
s_or_b64 vcc, vcc, s[{sE}:{sE+1}]
s_cbranch_vccnz L_slow
L_slow_ret:
v_rcp_f32 v6, v{OA+12}
v_rcp_f32 v8, v{OBr+12}
s_nop 0""")
    for O,rc,dst in ((OA,6,16),(OBr,8,24)):
        for p in range(6): a.e(f"v_pk_mul_f32 {vr(O+2*p,2)}, {vr(O+2*p,2)}, {vr(rc,2)} op_sel_hi:[1,0]")
        for p in range(6): a.e(f"v_cvt_pk_bf16_f32 v{dst+p}, v{O+2*p}, v{O+2*p+1}")
    a.e(f"""buffer_store_dwordx4 v[16:19], v4, {sr(sWS,4)}, s{T1} offen sc1
buffer_store_dwordx4 v[24:27], v4, {sr(sWS,4)}, s{T2} offen sc1
v_permlane32_swap_b32 v20, v28
v_permlane32_swap_b32 v21, v29
buffer_store_dwordx2 v[20:21], v5, {sr(sWS,4)}, s{T3} offen sc1""")
    lane32x4(a,vXA)
    flag_off(a,sXO,AF,((sQB,7),),10)
    flag_off(a,sOwn,AF,((sQB,7),(sH,2)))
    sync_begin(a,0,10)
    stamp(a,12)
    w1_load(a)
    stamp(a,18)

vW2D=228
def w2_addr(a):
    a.e(f"""v_lshrrev_b32 v2, 3, v{vL}
v_lshlrev_b32 v2, 12, v2
v_bfe_u32 v3, v{vL}, 4, 2
v_lshlrev_b32 v3, 1, v3
v_and_b32 v4, 7, v{vL}
v_xor_b32 v3, v3, v4
v_lshl_add_u32 v{vW2D}, v3, 4, v2""")
def w2_dma(a, steps):
    a.e(f"""s_mul_i32 s{T0}, s{sWave}, {384*4096}
s_lshl_b32 s{T1}, s{sRB}, 7
s_add_u32 s{T0}, s{T0}, s{T1}
s_mul_i32 s{T1}, s{sWave}, {WREG}""")
    for st in steps:
        for n in range(4):
            a.e(f"s_add_u32 m0, s{T1}, {(st%10)*4096+n*1024}\ns_add_u32 s{T2}, s{T0}, {(32*st+8*n)*4096}\nbuffer_load_dwordx4 v{vW2D}, {sr(sW2,4)}, s{T2} offen lds")

def wo_read(a,t,slot):
    for i in range(5):
        for u in range(2):
            if t<16: base,off=(4,(40*t+8*u)*160+32*i)
            else: base,off=(6,(160*(t-16)+20*u)*160+32*i)
            if off>=51200: base+=1; off-=51200
            a.e(f"ds_read_b64_tr_b16 {vr(120+slot*20+4*i+2*u,2)}, v{base} offset:{off}")

def outproj(a):
    a.c("==== out-proj")
    a.e(f"""v_lshrrev_b32 v2, 5, v{vL}
v_mul_u32_u24 v2, 20, v2
v_bfe_u32 v3, v{vL}, 2, 3
v_add_u32 v2, v2, v3
v_mul_u32_u24 v2, 160, v2
v_and_b32 v8, 3, v{vL}
v_lshl_add_u32 v4, v8, 3, v2
v_add_u32 v5, 51200, v4
v_lshrrev_b32 v2, 4, v{vL}
v_mul_u32_u24 v2, 40, v2
v_bfe_u32 v3, v{vL}, 2, 2
v_add3_u32 v2, v2, v3, 16
v_mul_u32_u24 v2, 160, v2
v_lshl_add_u32 v6, v8, 3, v2
v_add_u32 v7, 51200, v6""")
    for t in range(6): wo_read(a,t,t)
    a.e(f"""s_mul_i32 s{T0}, s{sL}, {XB_L}
s_add_u32 s{T0}, s{T0}, {OB}
s_lshl_b32 s{T1}, s{sRB}, 2
s_add_u32 s{T1}, s{T1}, s{sWave}
s_mul_i32 s{T1}, s{T1}, 20480
s_add_u32 s{T0}, s{T0}, s{T1}
v_lshlrev_b32 v2, 4, v{vL}
v_lshlrev_b32 v3, 3, v{vL}""")
    sync_end(a)
    stamp(a,13)
    vm=VM(a)
    for t in range(20):
        if t<16: a.e(f"buffer_load_dwordx4 {vr(40+4*t,4)}, v2, {sr(sWS,4)}, s{T0} offen offset:{1024*(t%4)}"); vm.issue(t)
        else:
            for u in range(2): a.e(f"buffer_load_dwordx2 {vr(40+4*t+2*u,2)}, v3, {sr(sWS,4)}, s{T0} offen offset:{1024*(t%4)+512*u}"); vm.issue(t)
        if t%4==3: a.e(f"s_add_u32 s{T0}, s{T0}, 4096")
    a.e("s_waitcnt lgkmcnt(0)")
    for t in range(20):
        vm.wait(t)
        if t>=6: a.e(f"s_waitcnt lgkmcnt({10 if t<15 else 0})")
        for i in range(5): a.e(m16(16+4*i,120+(t%6)*20+4*i,40+4*t,"0" if t==0 else None))
        if t+6<20: wo_read(a,t+6,t%6)
    stamp(a,14)
    a.e("s_barrier")
    w2_addr(a)
    if EV("W2S","0"): w2_dma(a,(0,1))
    a.c("epilogue: residual, stats, exchange, normalise, transpose, store H")
    a.e(f"s_mov_b32 s{T0}, 0xffff0000")
    for i in range(10):
        a.e(f"v_lshlrev_b32 v{40+2*i}, 16, v{RES+i}\nv_and_b32 v{41+2*i}, s{T0}, v{RES+i}")
    for i in range(10):
        a.e(f"v_pk_add_f32 {vr(16+2*i,2)}, {vr(16+2*i,2)}, {vr(40+2*i,2)}")
    for i in range(10): a.e(f"v_cvt_pk_bf16_f32 v{RES+i}, v{16+2*i}, v{17+2*i}")
    tile_stats(a,16,40,41,42)
    stat_addr(a,43,None)
    a.e(f"""s_mul_i32 s{T2}, s{sL}, {STAT_L}
s_add_u32 s{T2}, s{T2}, {STAT}
s_lshl_b32 s{T0}, s{sDT}, 3
s_add_u32 s{T1}, s{T0}, s{T2}
s_mov_b64 exec, 0xffff
buffer_store_dwordx2 v[40:41], v43, {sr(sWS,4)}, s{T1} offen sc1
s_mov_b64 exec, -1
v_and_b32 v44, 48, v{vL}
v_add_u32 v44, v43, v44
s_mov_b32 s{T6}, s{T2}""")
    a.e(f"""s_mul_i32 s{T3}, s{sWave}, {WREG}
s_add_u32 s{T3}, s{T3}, 28672
v_and_b32 v2, 15, v{vL}
v_mul_u32_u24 v45, 160, v2
v_lshrrev_b32 v3, 4, v{vL}
v_lshl_add_u32 v45, v3, 3, v45
v_add_u32 v45, s{T3}, v45
v_lshrrev_b32 v4, 5, v{vL}
v_bfe_u32 v5, v{vL}, 2, 2
v_lshl_add_u32 v5, v4, 3, v5
v_mul_u32_u24 v46, 160, v5
v_and_b32 v5, 16, v{vL}
v_lshl_add_u32 v46, v5, 1, v46
v_and_b32 v5, 3, v{vL}
v_lshl_add_u32 v46, v5, 3, v46
v_add_u32 v46, s{T3}, v46
s_mul_i32 s{T4}, s{sL}, {XB_L}
s_add_u32 s{T4}, s{T4}, {HB}
s_lshl_b32 s{T5}, s{sRB}, 2
s_add_u32 s{T5}, s{T5}, s{sWave}
s_lshl_b32 s{T5}, s{T5}, 10
s_add_u32 s{T4}, s{T4}, s{T5}
s_mul_i32 s{T5}, s{sDT}, 5
v_bfe_u32 v5, v{vL}, 4, 1
v_add_u32 v5, s{T5}, v5
v_lshlrev_b32 v6, 9, v4
v_lshl_add_u32 v6, v2, 4, v6""")
    for n in range(3):
        a.e(f"""v_add_u32 v7, {2*n}, v5
v_lshrrev_b32 v8, 1, v7
v_lshlrev_b32 v8, 17, v8
v_and_b32 v7, 1, v7
v_lshl_add_u32 v8, v7, 8, v8
v_add_u32 v{47+n}, v8, v6""")
    stamp(a,15)
    lab=a.label("SPOLL")
    a.e(f"""s_mov_b32 s{sSpin}, {SPIN}
{lab}:
buffer_load_dwordx4 v[52:55], v44, {sr(sWS,4)}, s{T6} offen sc1
s_sub_u32 s{sSpin}, s{sSpin}, 1
s_cbranch_scc1 L_exit
s_waitcnt vmcnt(0)
v_max_u32 v56, v52, v53
v_max3_u32 v56, v56, v54, v55
v_cmp_eq_u32 vcc, -1, v56
s_cbranch_vccnz {lab}
v_add_f32 v52, v52, v54
v_add_f32 v53, v53, v55""")
    stamp(a,16)
    if EV("W2S","0"): w2_dma(a,(2,3))
    xsum(a,52,54); xsum(a,53,54)
    a.e(f"""s_mov_b32 s{T0}, 0x{f2u(1/640):x}
s_mov_b32 s{T1}, 0x{f2u(1e-5):x}
v_mul_f32 v52, s{T0}, v52
v_mul_f32 v53, s{T0}, v53
v_fma_f32 v53, -v52, v52, v53
v_max_f32 v53, 0, v53
v_add_f32 v54, s{T1}, v53
v_rsq_f32 v54, v54
s_nop 0
v_mul_f32 v53, v53, v54
v_fma_f32 v53, v53, v54, s{T1}
v_rsq_f32 v53, v53
s_nop 0
v_mul_f32 v54, v54, v53
v_mul_f32 v56, -v52, v54""")
    for i in range(10):
        a.e(f"v_pk_fma_f32 {vr(16+2*i,2)}, {vr(16+2*i,2)}, v[54:55], v[56:57] op_sel_hi:[1,0,0]")
    for i in range(10): a.e(f"v_cvt_pk_bf16_f32 v{60+i}, v{16+2*i}, v{17+2*i}")
    for i in range(5): a.e(f"ds_write_b64 v45, {vr(60+2*i,2)} offset:{32*i}")
    a.e("s_waitcnt lgkmcnt(0)")
    for n in range(3):
        for u in range(2): a.e(f"ds_read_b64_tr_b16 {vr(72+4*n+2*u,2)}, v46 offset:{640*u+64*n}")
    a.e(f"s_mov_b32 s{sE}, 0xffff\ns_mov_b32 s{sE+1}, 0xffff\ns_waitcnt lgkmcnt(0)")
    for n in range(3):
        if n==2: a.e(f"s_mov_b64 exec, s[{sE}:{sE+1}]")
        a.e(f"buffer_store_dwordx4 {vr(72+4*n,4)}, v{47+n}, {sr(sWS,4)}, s{T4} offen sc1")
    a.e("s_mov_b64 exec, -1")
```

```python
from asmlib import *
import math, struct
NAME="interleave_layers__mha_block__mixer_token_mlp__prompt"
def f2u(x): return struct.unpack("<I",struct.pack("<f",x))[0]
CTR=0; XSTAT=0x10000; STAT=0x50000; STAT_L=0x20000
KV=0x100000; KV_L=0x600000; CH=21504
OB=0xD00000; HB=0x1200000; XB_L=0x280000; UB=0x1700000; U_L=0x200000; X2=0x1B00000; WQP=0x2000000; WS_SIZE=0x2310000
def KVC(L): return L*32
AOC=64; OPC=80; G1C=96; XSC=128; NCTR=144
RING=102400; VS=145408; CWT=158208; FLAG=159744; LDS_SIZE=163840
WREG=40960
sX,sWQ,sWO,sW1,sW2,sB1,sB2,sOUT,sDBG,sWS,sPA,sGO=4,8,12,16,20,24,28,32,36,40,44,48
sWave,sL,sQB,sH,sRB,sDT,sDT1,sFT,sG1=52,53,54,55,56,57,58,59,60
sKV,sStep,sSpin,sChunk,sCur=80,81,82,83,84
T0,T1,T2,T3,T4,T5,T6,T7=61,62,63,64,65,66,67,68
sE=70
vL=0; RES=246
SPIN=1<<22
import os
DIAG=int(os.environ.get("DIAG","0"))
WS_SRD=WS_SIZE+(0x100000 if DIAG else 0)
def stamp(a,i):
    if not DIAG: return
    a.e(f"s_memrealtime s[90:91]\ns_lshl_b32 m0, s{sL}, 5\ns_add_u32 m0, m0, {i}\ns_waitcnt lgkmcnt(0)\nv_writelane_b32 v245, s90, m0")
def cstamp(a,i):
    if not DIAG: return
    a.e(f"s_memtime s[90:91]\ns_lshl_b32 m0, s{sL}, 5\ns_add_u32 m0, m0, {i}\ns_waitcnt lgkmcnt(0)\nv_writelane_b32 v245, s90, m0")
def stamp_out(a):
    if not DIAG: return
    stamp(a,31)
    a.e(f"s_lshl_b32 s{T0}, s2, 2\ns_add_u32 s{T0}, s{T0}, s{sWave}\ns_lshl_b32 s{T0}, s{T0}, 8\ns_add_u32 s{T0}, s{T0}, {WS_SIZE}\nv_lshlrev_b32 v2, 2, v{vL}\nbuffer_store_dword v245, v2, {sr(sWS,4)}, s{T0} offen")

class VM:
    def __init__(s,a): s.a=a; s.q=[]
    def issue(s,tag): s.q.append(tag)
    def wait(s,tag):
        if tag not in s.q: return
        idx=max(i for i,t in enumerate(s.q) if t==tag)
        n=len(s.q)-1-idx
        s.a.e(f"s_waitcnt vmcnt({min(n,63)})"); s.q=s.q[idx+1:]
    def clear(s): s.q=[]

def m32(d,a,b,c=None,ak="v"):
    c = vr(d,16) if c is None else c
    return f"v_mfma_f32_32x32x16_bf16 {vr(d,16)}, {vr(a,4,ak)}, {vr(b,4)}, {c}"
def m16(d,a,b,c=None):
    c = vr(d,4) if c is None else c
    return f"v_mfma_f32_16x16x32_bf16 {vr(d,4)}, {vr(a,4)}, {vr(b,4)}, {c}"

def wave0_only(a, fn):
    lab=a.label("W0")
    a.e(f"s_cmp_lg_u32 s{sWave}, 0\ns_cbranch_scc1 {lab}")
    fn(); a.e(f"{lab}:")

def atomic_inc(a, sctr, vt=1):
    a.e(f"""v_mov_b32 v{vt}, 1
s_mov_b64 exec, 1
buffer_atomic_add v{vt}, off, {sr(sWS,4)}, s{sctr} sc1
s_mov_b64 exec, -1""")

def poll(a, srd, soffs, target, vt=1):
    lab=a.label("POLL")
    a.e(f"s_mov_b32 s{sSpin}, {SPIN}\n{lab}:")
    for i,so in enumerate(soffs):
        a.e(f"buffer_load_dword v{vt+i}, off, {sr(srd,4)}, {so} sc1")
    a.e(f"s_sub_u32 s{sSpin}, s{sSpin}, 1\ns_cbranch_scc1 L_exit\ns_waitcnt vmcnt(0)")
    if len(soffs)==2: a.e(f"v_min_u32 v{vt}, v{vt}, v{vt+1}")
    a.e(f"v_cmp_gt_u32 vcc, {target}, v{vt}\ns_cbranch_vccnz {lab}")

def ctr_off(a, dst, base, sidx, lmul):
    a.e(f"s_mul_i32 s{dst}, s{sL}, {lmul}\ns_add_u32 s{dst}, s{dst}, s{sidx}\ns_add_u32 s{dst}, s{dst}, {base}\ns_lshl_b32 s{dst}, s{dst}, 8")

EV=lambda k,d="0":int(os.environ.get(k,d))
NREP=EV("NREP","8")
FLS=0x10000; FB=0x2310000-0x20000
XF,AF,HF,KF,UF=FB,FB+0x2000,FB+0x4000,FB+0x6000,FB+0x8000
sTag=99; vTAG=243; sRep=100
def flag_off(a,dst,base,terms,rep=0):
    a.e(f"s_lshl_b32 s{dst}, s{sL}, 16\ns_add_u32 s{dst}, s{dst}, {base}")
    for sreg,sh in tuple(terms)+(((sRep,rep),) if rep else ()):
        a.e(f"s_lshl_b32 s{T7}, s{sreg}, {sh}\ns_add_u32 s{dst}, s{dst}, s{T7}")
def flag_set(a,soff,rep=0):
    if not rep: a.e(f"s_mov_b64 exec, 1\nbuffer_atomic_swap v{vTAG}, off, {sr(sWS,4)}, s{soff} sc1\ns_mov_b64 exec, -1")
    else: a.e(f"s_mov_b64 exec, {(1<<NREP)-1}\nbuffer_atomic_swap v{vTAG}, v1, {sr(sWS,4)}, s{soff} offen sc1\ns_mov_b64 exec, -1")
def flag_wait(a,va,soff,vt=1):
    lab=a.label("FW")
    a.e(f"""s_mov_b32 s{sSpin}, {SPIN}
{lab}:
buffer_load_dword v{vt}, v{va}, {sr(sWS,4)}, s{soff} offen sc1
s_sub_u32 s{sSpin}, s{sSpin}, 1
s_cbranch_scc1 L_exit
s_waitcnt vmcnt(0)
v_cmp_ne_u32 vcc, s{sTag}, v{vt}
s_cbranch_vccnz {lab}""")
vXA=240; sXO=69; sOwn=101
def sync_begin(a,n,rep):
    a.e(f"v_lshlrev_b32 v1, {rep}, v{vL}\ns_waitcnt vmcnt({n})\ns_barrier")
    wave0_only(a,lambda: flag_set(a,sOwn,rep))
def sync_end(a):
    wave0_only(a,lambda: flag_wait(a,vXA,sXO))
    a.e("s_barrier")
def x_addrs(a):
    lane32x4(a,vXA)
    flag_off(a,sXO,XF,((sQB,7),),10)
    flag_off(a,sOwn,XF,((sRB,5),(sDT,2)))
def lane32x4(a,v): a.e(f"v_and_b32 v{v}, 31, v{vL}\nv_lshlrev_b32 v{v}, 2, v{v}")

def arrive(a, base, sidx, lmul):
    a.e("s_waitcnt vmcnt(0)\ns_barrier")
    def f():
        ctr_off(a,T0,base,sidx,lmul); atomic_inc(a,T0)
    wave0_only(a,f)

def xsum(a, x, t, kinds=(16,32)):
    for k in kinds:
        a.e(f"v_mov_b32 v{t}, v{x}\ns_nop 1\nv_permlane{k}_swap_b32 v{x}, v{t}\nv_add_f32 v{x}, v{x}, v{t}")

def tile_stats(a, U, S, Q, t):
    a.e(f"s_mov_b32 s{T0}, 0xffff0000")
    for i in range(10):
        a.e(f"v_lshlrev_b32 v{U+2*i}, 16, v{RES+i}\nv_and_b32 v{U+2*i+1}, s{T0}, v{RES+i}")
    a.e(f"v_add_f32 v{S}, v{U}, v{U+1}\nv_mul_f32 v{Q}, v{U}, v{U}\nv_fmac_f32 v{Q}, v{U+1}, v{U+1}")
    for i in range(2,20):
        a.e(f"v_add_f32 v{S}, v{S}, v{U+i}\nv_fmac_f32 v{Q}, v{U+i}, v{U+i}")
    xsum(a,S,t); xsum(a,Q,t)

def stat_addr(a, v, base_s):
    a.e(f"""s_lshl_b32 s{T1}, s{sRB}, 2
s_add_u32 s{T1}, s{T1}, s{sWave}
s_lshl_b32 s{T1}, s{T1}, 10
v_and_b32 v{v}, 15, v{vL}
v_lshlrev_b32 v{v}, 6, v{v}
v_add_u32 v{v}, s{T1}, v{v}""")

def wq_dma(a, V):
    t,u=V+9,V+10
    for i in range(9):
        a.e(f"""v_add_u32 v{t}, {64*i}, v{vL}
v_mul_u32_u24 v{V+i}, 7282, v{t}
v_lshrrev_b32 v{V+i}, 16, v{V+i}
v_mul_u32_u24 v{u}, 9, v{V+i}
v_sub_u32 v{t}, v{t}, v{u}
v_mul_u32_u24 v{u}, 22, v{t}
v_lshrrev_b32 v{u}, 6, v{u}
v_mul_u32_u24 v{V+i}, 3840, v{V+i}
v_lshlrev_b32 v{t}, 4, v{t}
v_add_u32 v{V+i}, v{V+i}, v{t}
v_mul_u32_u24 v{u}, 1232, v{u}
v_add_u32 v{V+i}, v{V+i}, v{u}""")
def wq_block(a,V,k,half=False):
    if half: a.e(f"s_and_b32 s{T0}, s{sWave}, 1\ns_add_u32 s{T0}, s{T0}, s{T6}")
    else: a.e(f"s_add_u32 s{T0}, s{sWave}, s{T6}")
    a.e(f"""s_add_u32 s{T0}, s{T0}, {4*k}
s_sub_u32 s{T1}, s{T0}, 10
s_cmp_ge_u32 s{T0}, 10
s_cselect_b32 s{T0}, s{T1}, s{T0}
s_mul_i32 s{T1}, s{T0}, 245760
s_mul_i32 s{T2}, s{sH}, 40
s_add_u32 s{T1}, s{T1}, s{T2}
s_mul_i32 s{T2}, s{T0}, 9216""")
    l1=a.label("WH"); l2=a.label("WE")
    for i in range(9):
        if half and i==0: a.e(f"s_cmp_gt_u32 s{sWave}, 1\ns_cbranch_scc1 {l1}")
        if half and i==5: a.e(f"s_branch {l2}\n{l1}:")
        a.e(f"s_add_u32 m0, s{T2}, {1024*i}\ns_nop 0\nbuffer_load_dwordx4 v{V+i}, {sr(sWQ,4)}, s{T1} offen lds")
    if half: a.e(f"{l2}:")

def prologue(a):
    a.e(f"""s_cmp_ge_u32 s2, 256
s_cbranch_scc1 L_exit
s_load_dwordx16 s[64:79], s[0:1], 0
s_load_dwordx4 s[84:87], s[0:1], 64
s_load_dwordx2 s[88:89], s[0:1], 80
v_lshrrev_b32 v1, 6, v0
v_and_b32 v0, 63, v0
s_nop 0
v_readfirstlane_b32 s{sWave}, v1
s_and_b32 s{T0}, s2, 7
s_lshr_b32 s{T1}, s2, 3
s_lshr_b32 s{T2}, s{T0}, 1
s_and_b32 s{T0}, s{T0}, 1
s_lshl_b32 s{sQB}, s{T2}, 1
s_lshr_b32 s3, s{T1}, 4
s_add_u32 s{sQB}, s{sQB}, s3
s_lshl_b32 s{sH}, s{T0}, 4
s_and_b32 s3, s{T1}, 15
s_add_u32 s{sH}, s{sH}, s3
s_lshl_b32 s{sRB}, s{T2}, 3
s_lshr_b32 s3, s{T1}, 2
s_add_u32 s{sRB}, s{sRB}, s3
s_lshl_b32 s{sDT}, s{T0}, 2
s_and_b32 s3, s{T1}, 3
s_add_u32 s{sDT}, s{sDT}, s3
s_mul_i32 s3, s{T1}, 13
s_lshr_b32 s3, s3, 6
s_mul_i32 s{sFT}, s{T2}, 6
s_add_u32 s{sFT}, s{sFT}, s3
s_mul_i32 s3, s3, 5
s_sub_u32 s3, s{T1}, s3
s_mul_i32 s{sDT1}, s{T0}, 5
s_add_u32 s{sDT1}, s{sDT1}, s3
s_cmp_lt_u32 s{T1}, 30
s_cselect_b32 s{sG1}, 1, 0
s_mov_b32 s{sL}, 0
s_lshr_b32 s{sRep}, s2, 3
s_and_b32 s{sRep}, s{sRep}, {NREP-1}
s_waitcnt lgkmcnt(0)""")
    for srd,p,n in ((sX,64,2621440),(sWQ,66,2457600),(sWO,68,819200),(sW1,72,6291456),(sB1,74,3072),(sW2,76,6291456),(sB2,78,4096),(sOUT,84,2621440),(sDBG,86,256),(sWS,88,WS_SRD),(sGO,88,WS_SIZE)):
        a.e(f"s_mov_b32 s{srd}, s{p}\ns_mov_b32 s{srd+1}, s{p+1}\ns_mov_b32 s{srd+2}, {n}\ns_mov_b32 s{srd+3}, 0x20000")
    stamp(a,0)
    a.e(f"buffer_load_dword v{vTAG}, off, {sr(sWS,4)}, 0 sc1")
    if EV("IPF","0"):
        a.e(f"""s_getpc_b64 s[90:91]
L_pc:
s_lshr_b32 s{T0}, s2, 3
s_lshl_b32 s{T0}, s{T0}, 2
s_add_u32 s{T0}, s{T0}, s{sWave}
s_lshl_b32 s{T0}, s{T0}, 7""")
        for k in range(4):
            a.e(f"""s_add_u32 s{T1}, s{T0}, {16384*k}
s_min_u32 s{T1}, s{T1}, L_exit-L_pc
s_add_u32 s92, s90, s{T1}
s_addc_u32 s93, s91, 0
s_load_dword s{94+k}, s[92:93], 0""")
    a.e(f"""s_lshl_b32 s{T0}, s{sRB}, 2
s_add_u32 s{T0}, s{T0}, s{sWave}
s_mul_i32 s{T0}, s{T0}, {16*1280}
s_mul_i32 s{T1}, s{sDT}, 160
s_add_u32 s{T0}, s{T0}, s{T1}
v_and_b32 v2, 15, v{vL}
v_mul_u32_u24 v2, 1280, v2
v_lshrrev_b32 v3, 4, v{vL}
v_lshl_add_u32 v2, v3, 3, v2""")
    for i in range(5):
        a.e(f"buffer_load_dwordx2 {vr(RES+2*i,2)}, v2, {sr(sX,4)}, s{T0} offen offset:{32*i}")
    a.e(f"""s_lshr_b32 s{T6}, s2, 3
s_mul_i32 s{T6}, s{T6}, 3
s_mul_i32 s{T0}, s{T6}, 205
s_lshr_b32 s{T0}, s{T0}, 11
s_mul_i32 s{T0}, s{T0}, 10
s_sub_u32 s{T6}, s{T6}, s{T0}""")
    a.e(f"""s_lshr_b32 s{T0}, s2, 3
s_lshl_b32 s{T0}, s{T0}, 2
s_add_u32 s{T0}, s{T0}, s{sWave}
s_mul_i32 s{T0}, s{T0}, 75
s_and_b32 s{T1}, s2, 1
s_mul_i32 s{T1}, s{T1}, 640""")
    PF=int(os.environ.get("PF","0"))
    for k in range(2*PF):
        a.e(f"""v_add_u32 v4, s{T0}, v{vL}
v_add_u32 v4, {11*k}, v4
v_mul_u32_u24 v5, 13108, v4
v_lshrrev_b32 v5, 16, v5
v_mul_u32_u24 v5, {1280-640}, v5
v_lshl_add_u32 v4, v4, 7, v5
buffer_load_dword v{8+k}, v4, {sr(sWQ,4)}, s{T1} offen""")
    wq_dma(a,224); wq_block(a,224,0)

def x_prologue(a, vm, RD):
    for t in range(RD):
        x_load(a,vm,t,RD)
def x_load(a,vm,t,RD):
    r=96+(t%RD)*8
    a.e(f"buffer_load_dwordx4 {vr(r,4)}, v2, {sr(sWS,4)}, s{sCur} offen offset:{1024*(t%4)}\nbuffer_load_dwordx4 {vr(r+4,4)}, v3, {sr(sWS,4)}, s{sCur} offen offset:{1024*(t%4)}")
    if t%4==3: a.e(f"s_add_u32 s{sCur}, s{sCur}, 4096")
    vm.issue(("x",t)); vm.issue(("x",t))

def wq_read(a,t,buf):
    base=(4,5) if t<20 else (6,7)
    tt=t if t<20 else t-20
    for T in range(2):
        for u in range(2):
            a.e(f"ds_read_b64_tr_b16 {vr(80+buf*8+T*4+u*2,2)}, v{base[T]} offset:{(16*tt+4*u)*144}")

def frag_addr(a,base):
    a.e(f"""v_and_b32 v5, 15, v{vL}
v_bfe_u32 v6, v{vL}, 4, 1
v_lshrrev_b32 v7, 5, v{vL}
s_lshl_b32 s{T0}, s{sRB}, 1
s_lshr_b32 s{T1}, s{sWave}, 1
s_add_u32 s{T0}, s{T0}, s{T1}
s_mul_i32 s{T0}, s{T0}, 40
s_mul_i32 s{T1}, s{sDT}, 5
s_add_u32 s{T0}, s{T0}, s{T1}
s_lshl_b32 s{T0}, s{T0}, 10
s_and_b32 s{T1}, s{sWave}, 1
s_lshl_b32 s{T1}, s{T1}, 8
s_add_u32 s{T0}, s{T0}, s{T1}
s_add_u32 s{T0}, s{T0}, {base}
v_lshlrev_b32 v5, 4, v5
v_lshl_add_u32 v5, v7, 9, v5
v_lshl_add_u32 v2, v6, 10, v5
v_add_u32 v3, 2048, v2
v_lshl_add_u32 v4, v6, 3, v5
v_add_u32 v4, 4096, v4""")
def x_store(a,srd,B=48):
    for n in range(2):
        a.e(f"v_mov_b32 v{B+4*n}, v{RES+4*n}\nv_mov_b32 v{B+1+4*n}, v{RES+4*n+1}\nv_mov_b32 v{B+2+4*n}, v{RES+4*n+2}\nv_mov_b32 v{B+3+4*n}, v{RES+4*n+3}")
    a.e(f"buffer_store_dwordx2 {vr(RES+8,2)}, v4, {sr(srd,4)}, s{T0} offen sc1")
    for n in range(2):
        a.e(f"v_permlane16_swap_b32 v{B+4*n}, v{B+2+4*n}\nv_permlane16_swap_b32 v{B+1+4*n}, v{B+3+4*n}")
    a.e(f"""buffer_store_dwordx4 {vr(B,4)}, v2, {sr(srd,4)}, s{T0} offen sc1
buffer_store_dwordx4 {vr(B+4,4)}, v3, {sr(srd,4)}, s{T0} offen sc1""")
vCW=244
def wqp_store(a,vl16):
    lab=a.label("NOPACK")
    a.e(f"""s_cmp_lg_u32 s{sL}, 0
s_cbranch_scc1 {lab}
s_lshl_b32 s{T0}, s{sQB}, 2
s_add_u32 s{T0}, s{T0}, s{sWave}
s_lshl_b32 s{T1}, s{T0}, 10
s_mul_i32 s{T2}, s{sH}, 92160
s_add_u32 s{T1}, s{T1}, s{T2}
s_add_u32 s{T1}, s{T1}, {WQP}
s_add_u32 s{T2}, s{T1}, 32768
s_add_u32 s{T3}, s{T1}, 65536
buffer_store_dwordx4 v[208:211], v{vl16}, {sr(sWS,4)}, s{T1} offen sc1
buffer_store_dwordx4 v[212:215], v{vl16}, {sr(sWS,4)}, s{T2} offen sc1
s_cmp_gt_u32 s{T0}, 25
s_cbranch_scc1 {lab}
buffer_store_dwordx4 v[216:219], v{vl16}, {sr(sWS,4)}, s{T3} offen sc1
{lab}:""")
def phase1(a):
    RD=14
    vm=VM(a)
    a.c("==== L0-only startup: fragment-major copy + stats of input tile")
    frag_addr(a,X2)
    stamp(a,26)
    a.e(f"""s_waitcnt vmcnt({9+2*int(os.environ.get("PF","0"))})
v_readfirstlane_b32 s{sTag}, v{vTAG}
s_mul_i32 s{sTag}, s{sTag}, 1664525
s_add_u32 s{sTag}, s{sTag}, 1013904223
v_mov_b32 v{vTAG}, s{sTag}""")
    stamp(a,27)
    x_store(a,sWS)
    tile_stats(a,16,40,41,42)
    stat_addr(a,43,None)
    a.e(f"""s_lshl_b32 s{T0}, s{sDT}, 3
s_add_u32 s{T1}, s{T0}, {XSTAT}
s_add_u32 s{T2}, s{T0}, {STAT}
s_add_u32 s{T3}, s{T0}, {STAT+STAT_L}
v_mov_b32 v44, -1
v_mov_b32 v45, -1
s_mov_b64 exec, 0xffff
buffer_store_dwordx2 v[40:41], v43, {sr(sWS,4)}, s{T1} offen sc1
buffer_store_dwordx2 v[44:45], v43, {sr(sWS,4)}, s{T2} offen sc1
buffer_store_dwordx2 v[44:45], v43, {sr(sWS,4)}, s{T3} offen sc1
s_mov_b64 exec, -1""")
    if EV("SB"): wq_block(a,224,1)
    x_addrs(a)
    sync_begin(a,9 if EV("SB") else 0,10)
    if EV("TLB","0"):
        a.e(f"v_lshlrev_b32 v4, 19, v{vL}\nv_lshlrev_b32 v5, 17, v{vL}\nbuffer_load_dword v8, v4, {sr(sWS,4)}, 0 offen\nv_add_u32 v4, 0x2000000, v4\nbuffer_load_dword v8, v4, {sr(sWS,4)}, 0 offen")
        for srd in (sW1,sW2,sWO,sOUT): a.e(f"buffer_load_dword v8, v5, {sr(srd,4)}, 0 offen")
    if not EV("SB"): wq_block(a,224,1)
    stamp(a,30)
    wq_block(a,224,2,half=True)
    stamp(a,1)
    a.e("L_layer:")
    stamp(a,2)
    a.c("==== cw pass")
    C={0:([48,64,56,72],[80,32,96,104]),1:([0,16,8,24],[112,120,128,136])}
    pk=lambda l: sum(x<<(8*i) for i,x in enumerate(l))
    a.e(f"""v_lshrrev_b32 v8, 5, v{vL}
v_bfe_u32 v9, v{vL}, 2, 2
v_lshl_add_u32 v8, v8, 3, v9
v_mul_u32_u24 v8, 144, v8
v_and_b32 v9, 3, v{vL}
v_lshlrev_b32 v9, 3, v9
v_and_b32 v10, 16, v{vL}
v_cmp_eq_u32 vcc, 0, v10""")
    for T in range(2):
        a.e(f"""v_mov_b32 v10, 0x{pk(C[T][1]):x}
v_mov_b32 v11, 0x{pk(C[T][0]):x}
v_cndmask_b32 v10, v10, v11, vcc
v_lshrrev_b32 v10, v9, v10
v_and_b32 v10, 0xff, v10
v_add_u32 v{4+T}, v8, v10
v_add_u32 v{6+T}, {20*16*144}, v{4+T}""")
    a.e(f"""s_lshl_b32 s{T0}, s{sWave}, 8
s_add_u32 s{T0}, s{T0}, {CWT}
v_lshrrev_b32 v8, 5, v{vL}
v_lshlrev_b32 v8, 4, v8
v_add_u32 v8, s{T0}, v8
v_lshlrev_b32 v9, 2, v{vL}
v_add_u32 v9, s{T0}, v9""")
    a.e("v_mov_b32 v11, v9")
    a.e(f"""s_lshl_b32 s{T0}, s{sQB}, 2
s_add_u32 s{T0}, s{T0}, s{sWave}
s_mul_i32 s{sCur}, s{T0}, {80*1024}
s_mul_i32 s{T1}, s{sL}, {XB_L}
s_add_u32 s{sCur}, s{sCur}, s{T1}
s_add_u32 s{sCur}, s{sCur}, {X2}
v_lshlrev_b32 v2, 4, v{vL}
v_add_u32 v3, 40960, v2
s_lshl_b32 s{T5}, s{T0}, 12
s_mul_i32 s{T0}, s{sL}, {STAT_L}
s_add_u32 s{T5}, s{T5}, s{T0}
s_add_u32 s{T5}, s{T5}, {XSTAT}
v_and_b32 v9, 31, v{vL}
v_lshlrev_b32 v9, 6, v9
v_and_b32 v10, 32, v{vL}
v_add_u32 v9, v9, v10""")
    a.e(f"s_cmp_eq_u32 s{sWave}, 0\ns_cbranch_scc1 L_xw0\ns_waitcnt vmcnt(0)\nL_xw0:")
    sync_end(a)
    stamp(a,4)
    vm.clear(); x_prologue(a,vm,RD)
    lab=a.label("NOCW"); lab2=a.label("CWDONE")
    a.e(f"s_cmp_lg_u32 s{sL}, 0\ns_cbranch_scc1 {lab}")
    for i in range(4): a.e(f"v_mov_b32 v{12+i}, 0x3f803f80")
    a.e(f"s_mul_i32 s{T1}, s{sWave}, {10*16*144}\nv_add_u32 v10, s{T1}, v4\nv_add_u32 v1, s{T1}, v5")
    cr=lambda t:48+(t%6)*8
    def crd(t):
        for T in range(2):
            for u in range(2): a.e(f"ds_read_b64_tr_b16 {vr(cr(t)+T*4+u*2,2)}, v{12+4+44+T if 0 else 10 if T==0 else 1} offset:{(16*t+4*u)*144}")
    for t in range(3): crd(t)
    for t in range(10):
        if t+3<10: crd(t+3)
        a.e(f"s_waitcnt lgkmcnt({4*min(3,9-t)})")
        for T in range(2): a.e(m32(16+16*T,cr(t)+T*4,12,"0" if t==0 else None))
    a.e(f"""s_nop 7
v_subrev_u32 v62, {CWT-VS}, v8
v_lshlrev_b32 v63, 2, v{vL}
s_mov_b32 s{sE}, 1
s_mov_b32 s{sE+1}, 1
s_mov_b64 exec, s[{sE}:{sE+1}]""")
    for q in range(8): a.e(f"ds_write_b128 v62, {vr(16+4*q,4)} offset:{32*q}")
    a.e(f"""s_mov_b64 exec, -1
v_add_u32 v63, {VS}, v63
s_waitcnt lgkmcnt(0)
s_barrier
ds_read_b32 v64, v63
ds_read_b32 v65, v63 offset:256
ds_read_b32 v66, v63 offset:512
ds_read_b32 v67, v63 offset:768
s_waitcnt lgkmcnt(0)
v_add_f32 v64, v64, v65
v_add_f32 v66, v66, v67
v_add_f32 v{vCW}, v64, v66
{lab}:""")
    stamp(a,3)
    a.e(f"ds_write_b32 v11, v{vCW}")
    wq_read(a,0,0)
    a.c("==== P1 main loop")
    for t in range(40):
        if t+1<40: wq_read(a,t+1,(t+1)%2)
        vm.wait(("x",t))
        a.e(f"s_waitcnt lgkmcnt({4 if t+1<40 else 0})")
        r=96+(t%RD)*8
        for T in range(2):
            for k in range(2):
                a.e(m32(16+32*k+16*T,80+(t%2)*8+T*4,r+4*k,"0" if t==0 else None))
        if t+RD<40: x_load(a,vm,t+RD,RD)
        if t==26:
            for k in range(2):
                for i in range(2):
                    a.e(f"buffer_load_dwordx4 {vr(208+8*k+4*i,4)}, v9, {sr(sWS,4)}, s{T5} offen offset:{2048*k+16*i}"); vm.issue("st")
    stamp(a,5)
    a.c("==== P1 epilogue")
    for q in range(8): a.e(f"ds_read_b128 {vr(96+4*q,4)}, v8 offset:{32*q}")
    vm.wait("st")
    cq=math.log2(math.e)/math.sqrt(20.0)
    a.e(f"s_mov_b32 s{T0}, 0x{f2u(1/640):x}\ns_mov_b32 s{T1}, 0x{f2u(1e-5):x}\ns_mov_b32 s{T2}, 0x{f2u(cq):x}")
    a.e(f"v_mov_b32 v11, s{T2}\nv_cmp_gt_u32 vcc, 32, v{vL}\ns_nop 1\nv_cndmask_b32 v11, v11, 1.0, vcc")
    for k in range(2):
        b=208+8*k; S=224+8*k
        a.e(f"""v_add_f32 v{b}, v{b}, v{b+2}
v_add_f32 v{b+1}, v{b+1}, v{b+3}
v_add_f32 v{b+4}, v{b+4}, v{b+6}
v_add_f32 v{b+5}, v{b+5}, v{b+7}
v_add_f32 v{b}, v{b}, v{b+4}
v_add_f32 v{b+1}, v{b+1}, v{b+5}""")
        xsum(a,b,b+2,(32,)); xsum(a,b+1,b+2,(32,))
        a.e(f"""v_mul_f32 v{b}, s{T0}, v{b}
v_mul_f32 v{b+1}, s{T0}, v{b+1}
v_fma_f32 v{b+1}, -v{b}, v{b}, v{b+1}
v_max_f32 v{b+1}, 0, v{b+1}
v_add_f32 v{b+1}, s{T1}, v{b+1}
v_rsq_f32 v{S+2}, v{b+1}
v_sub_f32 v{S}, 0, v{b}
v_mul_f32 v{S+4}, s{T2}, v{S+2}
v_mul_f32 v{S+6}, v11, v{S+2}""")
    a.e("s_waitcnt lgkmcnt(0)")
    for k in range(2):
        S=224+8*k
        for T in range(2):
            for q in range(4):
                A=16+32*k+16*T+4*q; W=96+16*T+4*q
                sc = S+2
                if T==1 and q<2: sc=S+4
                if T==0 and q==2: sc=S+6
                for p in range(2):
                    a.e(f"v_pk_fma_f32 {vr(A+2*p,2)}, {vr(W+2*p,2)}, {vr(S,2)}, {vr(A+2*p,2)} op_sel_hi:[1,0,1]")
                for p in range(2):
                    a.e(f"v_pk_mul_f32 {vr(A+2*p,2)}, {vr(A+2*p,2)}, {vr(sc,2)} op_sel_hi:[1,0]")
                dst={(0,0):128+4*k,(0,1):130+4*k,(0,2):176+2*k,(0,3):136+6*k,(1,0):168+4*k,(1,1):170+4*k,(1,2):138+6*k,(1,3):140+6*k}[(T,q)]
                for p in range(2):
                    a.e(f"v_cvt_pk_bf16_f32 v{dst+p}, v{A+2*p}, v{A+2*p+1}")
        a.e(f"v_mov_b32 v12, 0x3f803f80\nv_cndmask_b32 v{140+6*k}, v12, v{140+6*k}, vcc\nv_cndmask_b32 v{141+6*k}, v12, v{141+6*k}, vcc")
    a.e(f"""s_mul_i32 s{sKV}, s{sL}, {KV_L}
s_mul_i32 s{T0}, s{sH}, {8*CH}
s_add_u32 s{sKV}, s{sKV}, s{T0}
s_add_u32 s{sKV}, s{sKV}, {KV}
s_mul_i32 s{T0}, s{sQB}, {CH}
s_add_u32 s{T0}, s{T0}, s{sKV}
s_mul_i32 s{T1}, s{sWave}, 3072
s_add_u32 s{T1}, s{T1}, {VS}
v_and_b32 v2, 31, v{vL}
v_lshrrev_b32 v3, 5, v{vL}
v_mul_u32_u24 v4, 48, v2
v_lshl_add_u32 v4, v3, 3, v4
v_add_u32 v4, s{T1}, v4""")
    for k in range(2):
        for i in range(3): a.e(f"ds_write_b64 v4, {vr(136+6*k+2*i,2)} offset:{1536*k+16*i}")
    a.e(f"""s_lshl_b32 s{T2}, s{sWave}, 11
v_lshlrev_b32 v5, 4, v{vL}
v_add_u32 v5, s{T2}, v5
v_add_u32 v6, {RING}, v5
v_bfe_u32 v7, v{vL}, 2, 2
v_lshl_add_u32 v7, v3, 2, v7
v_mul_u32_u24 v7, 48, v7
v_and_b32 v8, 16, v{vL}
v_lshl_add_u32 v7, v8, 1, v7
v_and_b32 v8, 3, v{vL}
v_lshl_add_u32 v7, v8, 3, v7
v_add_u32 v7, s{T1}, v7""")
    for k in range(2):
        a.e(f"buffer_store_dwordx4 {vr(128+4*k,4)}, v5, {sr(sWS,4)}, s{T0} offen offset:{1024*k} sc1\nds_write_b128 v6, {vr(128+4*k,4)} offset:{1024*k}")
    a.e(f"""s_lshl_b32 s{T2}, s{sWave}, 9
s_add_u32 s{T2}, s{T2}, 8192
v_lshlrev_b32 v5, 4, v{vL}
v_add_u32 v5, s{T2}, v5
v_add_u32 v6, {RING}, v5
s_mov_b32 s{sE}, -1
s_mov_b32 s{sE+1}, 0
s_mov_b64 exec, s[{sE}:{sE+1}]
buffer_store_dwordx4 v[176:179], v5, {sr(sWS,4)}, s{T0} offen sc1
ds_write_b128 v6, v[176:179]
s_mov_b64 exec, -1
s_waitcnt lgkmcnt(0)""")
    for k in range(2):
        for t in range(2):
            for u in range(2):
                a.e(f"ds_read_b64_tr_b16 {vr(144+8*k+4*t+2*u,2)}, v7 offset:{1536*k+(16*t+8*u)*48}")
    a.e(f"""v_permlane32_swap_b32 v176, v178
v_permlane32_swap_b32 v177, v179
s_mul_i32 s{T2}, s{sWave}, {4*672}
s_add_u32 s{T2}, s{T2}, 10240
v_mul_u32_u24 v5, 336, v3
v_lshl_add_u32 v5, v2, 4, v5
v_add_u32 v5, s{T2}, v5
v_add_u32 v6, {RING}, v5
s_mov_b32 s{sE}, 0x1fffff
s_mov_b32 s{sE+1}, 0x1fffff
s_waitcnt lgkmcnt(0)
s_mov_b64 exec, s[{sE}:{sE+1}]""")
    for k in range(2):
        for t in range(2):
            o=(2*k+t)*672
            a.e(f"buffer_store_dwordx4 {vr(144+8*k+4*t,4)}, v5, {sr(sWS,4)}, s{T0} offen offset:{o} sc1\nds_write_b128 v6, {vr(144+8*k+4*t,4)} offset:{o}")
    a.e("s_mov_b64 exec, -1\ns_waitcnt lgkmcnt(0)")
    a.e(f"""s_lshl_b32 s{T0}, s{sQB}, 2
s_add_u32 s{T0}, s{T0}, s{sWave}
s_lshl_b32 s{T1}, s{T0}, 10
v_lshlrev_b32 v10, 4, v{vL}
v_add_u32 v11, s{T1}, v10
ds_read_b128 v[208:211], v11
ds_read_b128 v[212:215], v11 offset:32768
v_add_u32 v11, 65536, v11
ds_read_b128 v[216:219], v11
s_waitcnt lgkmcnt(0)""")
    stamp(a,6)
    a.e("s_barrier")
    stamp(a,7)
```

```python
from gen1 import *
SA,SB,OA,OBr,PP=16,48,80,96,112
KM=(128,132); KR=(136,140); VV=(144,152,160); QA,QB,QR=168,172,178
aK,aR,aV=180,181,182
WOA=188
vDMA=193
def m2b(d,a,b,c="0"): return f"v_mfma_f32_32x32x4_2b_bf16 {vr(d,32)}, {vr(a,2)}, {vr(b,2)}, {c}"
def vbuf(i): return VV[2] if i%8==7 else VV[i%2]
def rdK(i):
    n=3 if i>=8 else 0
    return f"ds_read_b128 {vr(KM[i%2],4)}, v{aK+n} offset:{(i%8)*1024}"
def rdR(p):
    n=3 if p>=4 else 0
    return f"ds_read_b128 {vr(KR[p%2],4)}, v{aR+n} offset:{(p%4)*512}"
def rdV(i):
    n=3 if i>=8 else 0
    return [f"ds_read_b128 {vr(vbuf(i)+4*t,4)}, v{aV+n} offset:{(i%8)*1344+672*t}" for t in range(2)]
def krem(i): return KR[(i//2)%2]+2*(i%2)

def attn_iter(a,i,first=False,cinit="0",ex=None):
    S=SA if i%2==0 else SB; N=SB if i%2==0 else SA
    v=[]
    for h in range(2):
        b=S+16*h
        for e in range(16):
            v.append(f"v_exp_f32 v{b+e}, v{b+e}")
            if e%2==1 and e>=3: v.append(f"v_cvt_pk_bf16_f32 v{PP+8*h+(e-3)//2}, v{b+e-3}, v{b+e-2}")
        v.append(("late",f"v_cvt_pk_bf16_f32 v{PP+8*h+7}, v{b+14}, v{b+15}"))
    seq=[]; pend=None
    for x in v:
        if isinstance(x,tuple): pend=x[1]; continue
        seq.append(x)
        if pend: seq.append(pend); pend=None
    extra={}
    def at(p,s): extra.setdefault(p,[]).append(s)
    pv=vbuf(i-1); cv=vbuf(i)
    at(0,m2b(N,krem(i+1),QR,cinit))
    if not first:
        at(8,m32(OBr,pv,PP+8,"0" if first=="second" else None)); at(14,m32(OBr,pv+4,PP+12))
    at(21,m32(N,KM[(i+1)%2],QA))
    at(27,m32(OA,cv,PP,"0" if first else None))
    at(34,m32(N+16,KM[(i+1)%2],QB))
    at(40,m32(OA,cv+4,PP+4))
    at(2,rdK(i+2))
    if i%2==0: at(5,rdR(i//2+1))
    if i!=6:
        for n,x in enumerate(rdV(i+1)): at(16+3*n,x)
    if i==5:
        for n,x in enumerate(rdV(7)): at(23+6*n,x)
    if ex:
        for p,l in ex.items():
            for y in l: at(p,y)
    for p,x in enumerate(seq):
        for y in extra.get(p,[]):
            if callable(y): y()
            else: a.e(y)
        a.e(x)
    a.e("s_waitcnt lgkmcnt(0)")
    a.e(pend)

sKVW,sLW=92,93
def kv_dma(a, schunk, slot_s):
    a.e(f"""s_mul_i32 s{T0}, s{schunk}, {CH}
s_add_u32 m0, s{sLW}, s{slot_s}
s_add_u32 s{T0}, s{T0}, s{sKVW}""")
    for n in range(4): a.e(f"buffer_load_dwordx4 v{vDMA}, {sr(sWS,4)}, s{T0} offen offset:{1024*n} lds")
    a.e(f"s_add_u32 m0, m0, 3328\ns_add_u32 s{T0}, s{T0}, 3328")
    for n in range(2): a.e(f"buffer_load_dwordx4 v{vDMA}, {sr(sWS,4)}, s{T0} offen offset:{1024*n} lds")

W1A=10; W1R=14; sWOB,sW1B,sW1L=94,T5,96
def w1_setup(a):
    a.e(f"""v_lshrrev_b32 v2, 3, v{vL}
v_mul_u32_u24 v2, 3072, v2
v_bfe_u32 v3, v{vL}, 4, 1
v_lshlrev_b32 v3, 2, v3
v_and_b32 v4, 7, v{vL}
v_xor_b32 v3, v3, v4
v_lshl_add_u32 v{W1A}, v3, 4, v2
v_add_u32 v{W1A+1}, {24576-1024}, v{W1A}
v_add_u32 v{W1A+2}, {2*(24576-1024)}, v{W1A}
v_add_u32 v{W1A+3}, {3*(24576-1024)}, v{W1A}
s_mul_i32 s{sW1B}, s{sWave}, {512*3072}
s_lshl_b32 s{T1}, s{sFT}, 7
s_add_u32 s{sW1B}, s{sW1B}, s{T1}
s_mul_i32 s{sW1L}, s{sWave}, 15360
s_add_u32 s{sW1L}, s{sW1L}, {RING}
v_lshrrev_b32 v3, 5, v{vL}
v_bfe_u32 v4, v{vL}, 2, 2
v_lshl_add_u32 v3, v3, 3, v4
v_lshlrev_b32 v3, 7, v3
v_add_u32 v3, s{sW1L}, v3
v_and_b32 v4, 1, v{vL}
v_lshl_add_u32 v3, v4, 3, v3
v_bfe_u32 v4, v{vL}, 1, 1
v_lshl_add_u32 v3, v4, 4, v3
v_bfe_u32 v4, v{vL}, 4, 1
v_lshl_add_u32 v3, v4, 5, v3
v_bfe_u32 v4, v{vL}, 3, 1
s_lshr_b32 s{T2}, s{sWave}, 1
v_xor_b32 v4, s{T2}, v4
v_lshl_add_u32 v{W1R}, v4, 6, v3
v_xor_b32 v4, 1, v4
v_lshl_add_u32 v{W1R+1}, v4, 6, v3""")
sC,sSlotC,sSlotN,sNext=85,86,87,88
sKC,sW1F,sEv=97,98,95
sKM,sKA,sKB,sWM,sWA,sPF=72,73,74,75,76,77
vPF=200; vJ=202; vKP=204
VA=230; WRD=220; sWQd=sDBG; NG=4
def w1_rd(a,st,R,off):
    for e in range(2):
        for u in range(2):
            a.e(f"ds_read_b64_tr_b16 {ar((st*2+e)*4+2*u,2)}, v{R+e} offset:{off+4*u*128}")
def wa_setup(a):
    a.e(f"""v_lshrrev_b32 v2, 3, v{vL}
v_mul_u32_u24 v2, 3072, v2
v_bfe_u32 v3, v{vL}, 4, 1
v_lshlrev_b32 v3, 2, v3
v_and_b32 v4, 7, v{vL}
v_xor_b32 v3, v3, v4
v_lshl_add_u32 v{VA}, v3, 4, v2""")
    for j in range(1,10): a.e(f"v_add_u32 v{VA+j}, {24576*j}, v{VA}")
    a.e(f"""s_mul_i32 s{sWA}, s{sWave}, {512*3072}
s_lshl_b32 s{T1}, s{sFT}, 7
s_add_u32 s{sWA}, s{sWA}, s{T1}
s_mov_b32 s{sWM}, s{sW1L}
v_lshrrev_b32 v3, 5, v{vL}
v_bfe_u32 v4, v{vL}, 2, 2
v_lshl_add_u32 v3, v3, 3, v4
v_lshlrev_b32 v3, 7, v3
v_add_u32 v3, s{sW1L}, v3
v_and_b32 v4, 1, v{vL}
v_lshl_add_u32 v3, v4, 3, v3
v_bfe_u32 v4, v{vL}, 1, 1
v_lshl_add_u32 v3, v4, 4, v3
v_bfe_u32 v4, v{vL}, 4, 1
v_lshl_add_u32 v3, v4, 5, v3
v_bfe_u32 v4, v{vL}, 3, 1
s_lshr_b32 s{T2}, s{sWave}, 1
v_xor_b32 v4, s{T2}, v4
v_lshl_add_u32 v{WRD}, v4, 6, v3
v_xor_b32 v4, 1, v4
v_lshl_add_u32 v{WRD+1}, v4, 6, v3
s_mul_i32 s{T0}, s{sDT1}, 13
s_lshr_b32 s{T0}, s{T0}, 6
s_mul_i32 s{T0}, s{T0}, 5
s_sub_u32 s{T0}, s{sDT1}, s{T0}
s_mul_i32 s{T0}, s{T0}, 40
s_lshl_b32 s{T2}, s{sWave}, 9
s_add_u32 s{T0}, s{T0}, s{T2}
s_add_u32 s{T0}, s{T0}, 320
v_add_u32 v{vPF}, s{T0}, v{vL}
v_mul_u32_u24 v{vPF}, 3072, v{vPF}
v_add_u32 v{vPF}, s{T1}, v{vPF}""")
    for i in range(4): a.e(f"s_mov_b32 s{sWQd+i}, s{sW1+i}")
def wa_events(a):
    for c in range(2,8):
        a.e(f"L_wev{c}:")
        g=c-3
        if 0<=g<NG:
            for j in range(5): w1_rd(a,5*g+j,WRD,(g%2)*10240+2048*j)
        if c<=4: a.e(f"s_add_u32 s{sWM}, s{sW1L}, {((c-1)%2)*10240}\ns_add_u32 s{sWA}, s{sWA}, {10*24576}")
        else:
            b=(0,2,4 if EV("W7","1") else 3)[c-5]
            a.e(f"s_add_u32 s{sWM}, s{sW1L}, {5120*b}\ns_add_u32 s{sWA}, s{sWOB}, {32*1280*b}")
        if c==5:
            for i in range(4): a.e(f"s_mov_b32 s{sWQd+i}, s{sWO+i}")
            for j in range(10): a.e(f"v_add_u32 v{VA+j}, {(1024*(j%5) if j%5<4 else 0)+32*1280*(j//5)}, v{WOA+j%5}")
        if c==6: a.e(f"v_mov_b32 v{vPF}, v{vPF+1}\ns_mov_b32 s{sPA}, s{sW2}\ns_mov_b32 s{sPA+1}, s{sW2+1}")
        if c==7: a.e(f"v_add_u32 v{vPF}, {32*4096}, v{vPF}")
        a.e("s_branch L_attn_loop" if c==7 and EV("W7","1") else "s_branch L_w_loop")
def w1_load(a):
    lab=a.label("NOW1")
    a.e(f"s_cmp_eq_u32 s{sW1F}, 0\ns_cbranch_scc1 {lab}")
    w1_setup(a)
    vm=VM(a); NS=7
    def dma(st):
        a.e(f"s_add_u32 m0, s{sW1L}, {(st%NS)*2048}\ns_add_u32 s{T2}, s{sW1B}, {16*st*3072}")
        for k in range(2): a.e(f"buffer_load_dwordx4 v{W1A+k}, {sr(sW1,4)}, s{T2} offen offset:{1024*k} lds"); vm.issue(st)
    S0=5*NG if EV("W1A","1") else 0
    for st in range(S0,S0+NS): dma(st)
    for st in range(S0,32):
        vm.wait(st)
        w1_rd(a,st,W1R,(st%NS)*2048)
        if st>S0 and st-1+NS<32: a.e("s_waitcnt lgkmcnt(4)"); dma(st-1+NS)
    a.e(f"{lab}:")

def slow(a):
    mA,mB=200,201; sP,sT,sB=72,73,74
    a.e(f"""L_slow:
v_and_b32 v10, 31, v{vL}
v_lshlrev_b32 v11, 4, v10
v_add_u32 v11, 8192, v11
v_min_u32 v10, 20, v10
v_lshrrev_b32 v12, 5, v{vL}
v_mul_u32_u24 v12, 336, v12
v_lshl_add_u32 v12, v10, 4, v12
v_add_u32 v12, 10240, v12
v_mov_b32 v{mA}, 0xff800000
v_mov_b32 v{mB}, 0xff800000
s_mov_b32 s{sP}, 0""")
    for r in range(32): a.e(f"v_mov_b32 v{OA+r}, 0")
    a.e(f"""L_sl_pass:
s_mov_b32 s{sT}, 0
L_sl_tile:
s_lshr_b32 s{sB}, s{sT}, 3
s_mul_i32 s{sB}, s{sB}, {CH}
s_add_u32 s{sB}, s{sB}, s{sKV}
s_and_b32 s75, s{sT}, 7
s_lshl_b32 s76, s75, 10
s_add_u32 s76, s76, s{sB}
buffer_load_dwordx4 v[128:131], v{vDMA}, {sr(sWS,4)}, s76 offen
s_lshr_b32 s76, s75, 1
s_lshl_b32 s76, s76, 9
s_and_b32 s77, s75, 1
s_lshl_b32 s77, s77, 3
s_add_u32 s76, s76, s77
s_add_u32 s76, s76, s{sB}
buffer_load_dwordx2 v[136:137], v11, {sr(sWS,4)}, s76 offen
s_mul_i32 s76, s75, 1344
s_add_u32 s76, s76, s{sB}
buffer_load_dwordx4 v[144:147], v12, {sr(sWS,4)}, s76 offen
buffer_load_dwordx4 v[148:151], v12, {sr(sWS,4)}, s76 offen offset:672
s_waitcnt vmcnt(0)""")
    a.e(m2b(SA,136,QR)); a.e("s_nop 15\ns_nop 3")
    a.e(m32(SA,128,QA)); a.e(m32(SA+16,128,QB)); a.e("s_nop 15")
    a.e(f"s_cmp_lg_u32 s{sP}, 0\ns_cbranch_scc1 L_sl_p2")
    for h,m in ((0,mA),(1,mB)):
        for e in range(0,16,2): a.e(f"v_max3_f32 v{m}, v{m}, v{SA+16*h+e}, v{SA+16*h+e+1}")
    a.e("s_branch L_sl_next\nL_sl_p2:")
    for h,m in ((0,mA),(1,mB)):
        for e in range(16): a.e(f"v_sub_f32 v{SA+16*h+e}, v{SA+16*h+e}, v{m}")
    for e in range(32): a.e(f"v_exp_f32 v{SA+e}, v{SA+e}")
    a.e("s_nop 0")
    for e in range(16): a.e(f"v_cvt_pk_bf16_f32 v{PP+e}, v{SA+2*e}, v{SA+2*e+1}")
    a.e("s_nop 1")
    a.e(m32(OA,144,PP)); a.e(m32(OBr,144,PP+8)); a.e(m32(OA,148,PP+4)); a.e(m32(OBr,148,PP+12))
    a.e(f"""s_nop 15
L_sl_next:
s_add_u32 s{sT}, s{sT}, 1
s_cmp_lt_u32 s{sT}, 64
s_cbranch_scc1 L_sl_tile
s_cmp_lg_u32 s{sP}, 0
s_cbranch_scc1 L_slow_ret""")
    for m in (mA,mB):
        a.e(f"v_mov_b32 v202, v{m}\ns_nop 1\nv_permlane32_swap_b32 v{m}, v202\nv_max_f32 v{m}, v{m}, v202")
    a.e(f"s_mov_b32 s{sP}, 1\ns_branch L_sl_pass")

def attention(a):
    a.c("==== attention")
    a.e(f"""v_lshlrev_b32 v{vDMA}, 4, v{vL}
v_add_u32 v{aK}, {RING}, v{vDMA}
v_and_b32 v2, 31, v{vL}
v_lshlrev_b32 v{aR}, 4, v2
v_add_u32 v{aR}, {RING+8192}, v{aR}
v_min_u32 v2, 20, v2
v_lshrrev_b32 v3, 5, v{vL}
v_mul_u32_u24 v3, 336, v3
v_lshl_add_u32 v{aV}, v2, 4, v3
v_add_u32 v{aV}, {RING+10240}, v{aV}""")
    for r in (aK,aR,aV): a.e(f"v_add_u32 v{r+3}, {CH}, v{r}")
    a.e(rdK(0)); a.e(rdK(1)); a.e(rdR(0))
    for x in rdV(0): a.e(x)
    for i in range(5):
        a.e(f"""v_add_u32 v2, {64*i}, v{vL}
v_mul_u32_u24 v3, 6554, v2
v_lshrrev_b32 v3, 16, v3
v_lshlrev_b32 v2, 4, v2
v_mul_u32_u24 v3, 1120, v3
v_add_u32 v{WOA+i}, v2, v3""")
        if 0<i<4: a.e(f"v_subrev_u32 v{WOA+i}, {1024*i}, v{WOA+i}")
    a.e(f"""s_mov_b32 s{sC}, 0
s_mov_b32 s{sSlotC}, {RING}
s_mov_b32 s{sSlotN}, {RING+CH}
s_mul_i32 s{sLW}, s{sWave}, 5376
s_add_u32 s{sKVW}, s{sKV}, s{sLW}
s_mul_i32 s{sWOB}, s{sDT}, 160
s_mul_i32 s{T0}, s{sWave}, {5*32*1280}
s_add_u32 s{sWOB}, s{sWOB}, s{T0}
s_mov_b32 s{sWA}, s{sWOB}
s_add_u32 s{sNext}, s{sQB}, 1
s_and_b32 s{sNext}, s{sNext}, 7
s_waitcnt lgkmcnt(0)""")
    a.e(m2b(SA,krem(0),QR))
    a.e(f"s_mul_i32 s{sW1L}, s{sWave}, 25600\ns_mov_b32 s{sWM}, s{sW1L}")
    flag_off(a,sKC,KF,((sH,7),))
    flag_off(a,T6,KF,((sH,7),(sQB,4),(sWave,2)))
    lane32x4(a,vKP)
    a.e("s_nop 2"); a.e(m32(SA,KM[0],QA)); a.e(m32(SA+16,KM[0],QB))
    for r in range(16): a.e(f"v_mov_b32 v{OBr+r}, 0")
    a.e(f"""s_and_b32 s{T0}, s{sDT}, 3
s_lshl_b32 s{T0}, s{T0}, 2
s_add_u32 s{T0}, s{T0}, s{sWave}
s_mul_i32 s{T0}, s{T0}, {96*4096}
s_lshl_b32 s{sPF}, s{sRB}, 7
s_add_u32 s{sPF}, s{sPF}, s{T0}
v_lshlrev_b32 v{vPF+1}, 12, v{vL}
v_add_u32 v{vPF+1}, s{sPF}, v{vPF+1}
s_xor_b32 s{sW1F}, s{sL}, 1
s_and_b32 s{sW1F}, s{sW1F}, s{sG1}
s_mul_i32 s{T0}, s{sDT1}, 13
s_lshr_b32 s{T0}, s{T0}, 6
s_mul_i32 s{T0}, s{T0}, 5
s_sub_u32 s{T0}, s{sDT1}, s{T0}
s_lshl_b32 s{T0}, s{T0}, 2
s_add_u32 s{T0}, s{T0}, s{sWave}
s_mul_i32 s{T0}, s{T0}, 104
s_lshl_b32 s{T1}, s{sFT}, 7
v_add_u32 v{vPF}, s{T0}, v{vL}
v_mul_u32_u24 v{vPF}, 3072, v{vPF}
v_add_u32 v{vPF}, s{T1}, v{vPF}
s_mov_b32 s{sPA}, s{sW1}
s_mov_b32 s{sPA+1}, s{sW1+1}
s_mov_b32 s{sPA+2}, s{sW1+2}
s_mov_b32 s{sPA+3}, s{sW1+3}
s_mov_b32 s{sEv}, 2
s_cmp_lg_u32 s{sW1F}, 0
s_cbranch_scc1 L_pfw1
v_mov_b32 v{vPF}, v{vPF+1}
s_mov_b32 s{sPA}, s{sW2}
s_mov_b32 s{sPA+1}, s{sW2+1}
s_mov_b32 s{sEv}, 7
L_pfw1:""")
    def kvp(p):
        so=sKB if p==2 else sKA
        o=(0,2048,0)[p]
        return [f"s_add_u32 m0, s{sKM}, {3328 if p==2 else 0}"]+[f"buffer_load_dwordx4 v{vDMA}, {sr(sWS,4)}, s{so} offen offset:{o+1024*n} lds" for n in range(2)]
    def wop(n):
        return [f"s_add_u32 m0, s{sWM}, {4096 if n==4 else 0}", f"buffer_load_dwordx4 v{WOA+n}, {sr(sWO,4)}, s{sWA} offen offset:{1024*(n%4)} lds"]
    def common_ex(i,vm,wo=True,pf=True):
        ex={}
        def put(l,tag,slots=(8,14)):
            k=0
            for y in l:
                if y.startswith("buffer"): ex.setdefault(slots[k],[]).extend([y,lambda t=tag: vm.issue(t)]); k+=1
                else: ex.setdefault(slots[k]-1,[]).append(y)
        if i in (6,7,0): put(kvp({6:0,7:1,0:2}[i]),"kv")
        if pf and i==1: put([f"buffer_load_dword v{vJ}, v{vPF}, {sr(sPA,4)}, 0 offen"],"pf")
        if wo and i in (3,4): put(wop(2*(i-3))+wop(2*(i-3)+1),"wo")
        if wo and i==5: put(wop(4),"wo")
        return ex
    def kv_first(vm):
        stamp(a,8)
        lab=a.label("KVOK")
        a.e(f"s_waitcnt vmcnt(0)\nv_cmp_ne_u32 vcc, s{sTag}, v1\ns_cbranch_vccz {lab}")
        flag_wait(a,vKP,sKC)
        a.e(f"{lab}:")
        stamp(a,9)
        kv_dma(a,sNext,sSlotN); vm.clear(); vm.issue("kv")

    def boundary(first,vm):
        a.e(f"""s_add_u32 s{sNext}, s{sNext}, 1
s_and_b32 s{sNext}, s{sNext}, 7
s_mul_i32 s{sKA}, s{sNext}, {CH}
s_add_u32 s{sKA}, s{sKA}, s{sKVW}
s_add_u32 s{sKB}, s{sKA}, 3328
s_add_u32 s{sKM}, s{sLW}, s{sSlotC}""")
        vm.wait("kv"); a.e("s_barrier")
        if first: stamp(a,10); cstamp(a,28); wqp_store(a,vDMA)
    def endchunk(wo):
        for r in (aK,aR,aV): a.e(f"v_swap_b32 v{r}, v{r+3}")
        a.e(f"s_mov_b32 s{T0}, s{sSlotC}\ns_mov_b32 s{sSlotC}, s{sSlotN}\ns_mov_b32 s{sSlotN}, s{T0}\ns_add_u32 s{sC}, s{sC}, 1")
        if wo: a.e(f"""s_max_u32 s{T0}, s{sC}, 3
s_sub_u32 s{T0}, s{T0}, 3
s_mul_i32 s{T1}, s{T0}, 5120
s_add_u32 s{sWM}, s{sW1L}, s{T1}
s_mul_i32 s{T1}, s{T0}, {32*1280}
s_add_u32 s{sWA}, s{sWOB}, s{T1}""")
    def chunk0(vm,exf):
        for i in range(8):
            KI=EV("KI","2")
            if i==KI: a.e("s_waitcnt vmcnt(0)"); flag_set(a,T6)
            if i==KI+2: a.e(f"buffer_load_dword v1, v{vKP}, {sr(sWS,4)}, s{sKC} offen sc1")
            if i==KI+3: kv_first(vm)
            if i==6: boundary(True,vm)
            ex=common_ex(i,vm,False,False) if i>=6 else {}
            if exf: exf(i,ex)
            attn_iter(a,i,first=(i==0),ex=ex)
    vm=VM(a)
    chunk0(vm,None); endchunk(True)
    if EV("W1A","1"):
        a.e(f"s_cmp_eq_u32 s{sW1F}, 0\ns_cbranch_scc1 L_attn_loop")
        wa_setup(a)
        a.e(".p2align 6\nL_w_loop:")
        vm=VM(a); vm.q=["kv"]*4
        for i in range(8):
            if i==6: boundary(False,vm)
            ex=common_ex(i,vm,False,False)
            if 1<=i<=5:
                for k,p in enumerate((8,14)):
                    j=2*(i-1)+k
                    ex.setdefault(p-1,[]).append(f"s_add_u32 m0, s{sWM}, {1024*j}")
                    ex.setdefault(p,[]).extend([f"buffer_load_dwordx4 v{VA+j}, {sr(sWQd,4)}, s{sWA} offen lds",lambda: vm.issue("wo")])
            if i==2: ex.setdefault(21,[]).extend([f"buffer_load_dword v{vJ}, v{vPF}, {sr(sPA,4)}, 0 offen",lambda: vm.issue("pf")])
            attn_iter(a,i,ex=ex)
        endchunk(False)
        for c in range(2,8): a.e(f"s_cmp_eq_u32 s{sC}, {c}\ns_cbranch_scc1 L_wev{c}")
        a.e("s_branch L_attn_done")
    a.e(".p2align 6\nL_attn_loop:")
    vm=VM(a); vm.q=["kv"]*4
    for i in range(8):
        if i==6: boundary(False,vm)
        attn_iter(a,i,ex=common_ex(i,vm))
    endchunk(True)
    a.e(f"s_cmp_eq_u32 s{sC}, s{sEv}\ns_cbranch_scc1 L_ev\ns_cmp_lt_u32 s{sC}, 8\ns_cbranch_scc1 L_attn_loop")
    def tails():
        a.e(f"""L_ev:
s_cmp_eq_u32 s{sC}, 6
s_cbranch_scc1 L_ev6
s_cmp_eq_u32 s{sC}, 7
s_cbranch_scc1 L_ev7
s_cmp_eq_u32 s{sC}, 4
s_cselect_b32 s{T0}, -1, 1
s_mul_i32 s{T0}, s{T0}, {40*3072}
s_cmp_eq_u32 s{sC}, 2
s_cselect_b32 s{T1}, 2, 1
v_add_u32 v{vPF}, s{T0}, v{vPF}
s_add_u32 s{sEv}, s{sEv}, s{T1}
s_branch L_attn_loop
L_ev6:
v_mov_b32 v{vPF}, v{vPF+1}
s_mov_b32 s{sPA}, s{sW2}
s_mov_b32 s{sPA+1}, s{sW2+1}
s_mov_b32 s{sEv}, 7
s_branch L_attn_loop
L_ev7:
v_add_u32 v{vPF}, {32*4096}, v{vPF}
s_branch L_attn_loop""")
        if EV("W1A","1"): wa_events(a)
        slow(a)
    global attn_tails
    attn_tails=tails
    a.e("L_attn_done:\ns_nop 0"); a.e(m32(OBr,VV[2],PP+8)); a.e(m32(OBr,VV[2]+4,PP+12))
    a.e("L_attn_fin:")
    stamp(a,11); cstamp(a,29)
    a.c("O store addresses")
    a.e(f"""s_mul_i32 s{T0}, s{sL}, {XB_L}
s_add_u32 s{T0}, s{T0}, {OB}
s_lshl_b32 s{T1}, s{sQB}, 2
s_add_u32 s{T1}, s{T1}, s{sWave}
s_mul_i32 s{T1}, s{T1}, {4*20480}
s_add_u32 s{T0}, s{T0}, s{T1}
s_lshr_b32 s{T1}, s{sH}, 1
s_lshl_b32 s{T1}, s{T1}, 10
s_and_b32 s{T2}, s{sH}, 1
s_lshl_b32 s{T3}, s{T2}, 9
s_add_u32 s{T1}, s{T1}, s{T3}
s_add_u32 s{T1}, s{T1}, s{T0}
s_lshr_b32 s{T3}, s{sH}, 3
s_lshl_b32 s{T3}, s{T3}, 10
s_bfe_u32 s{T4}, s{sH}, 0x20001
s_lshl_b32 s{T4}, s{T4}, 7
s_add_u32 s{T3}, s{T3}, s{T4}
s_lshl_b32 s{T2}, s{T2}, 9
s_add_u32 s{T3}, s{T3}, s{T2}
s_add_u32 s{T3}, s{T3}, {16*1024}
s_add_u32 s{T3}, s{T3}, s{T0}
s_add_u32 s{T2}, s{T1}, 40960
v_bfe_u32 v2, v{vL}, 4, 1
v_mul_u32_u24 v2, 20480, v2
v_and_b32 v3, 15, v{vL}
v_lshl_add_u32 v5, v3, 3, v2
v_lshl_add_u32 v2, v3, 4, v2
v_lshrrev_b32 v3, 5, v{vL}
v_lshl_add_u32 v4, v3, 8, v2
v_mul_u32_u24 v3, 40960, v3
v_add_u32 v5, v3, v5
s_mov_b32 s{T4}, 0x{f2u(2.0**-60):x}
s_mov_b32 s{T5}, 0x{f2u(2.0**60):x}""")
    a.c("range check of the row sums: outside [2^-60,2^60] (or NaN) the zero stand-in for the max is unsafe")
    a.e(f"""v_cmp_nge_f32 vcc, v{OA+12}, s{T4}
v_cmp_nle_f32 s[{sE}:{sE+1}], v{OA+12}, s{T5}
s_or_b64 vcc, vcc, s[{sE}:{sE+1}]
v_cmp_nge_f32 s[{sE}:{sE+1}], v{OBr+12}, s{T4}
s_or_b64 vcc, vcc, s[{sE}:{sE+1}]
v_cmp_nle_f32 s[{sE}:{sE+1}], v{OBr+12}, s{T5}
s_or_b64 vcc, vcc, s[{sE}:{sE+1}]
s_cbranch_vccnz L_slow
L_slow_ret:
v_rcp_f32 v6, v{OA+12}
v_rcp_f32 v8, v{OBr+12}
s_nop 0""")
    for O,rc,dst in ((OA,6,16),(OBr,8,24)):
        for p in range(6): a.e(f"v_pk_mul_f32 {vr(O+2*p,2)}, {vr(O+2*p,2)}, {vr(rc,2)} op_sel_hi:[1,0]")
        for p in range(6): a.e(f"v_cvt_pk_bf16_f32 v{dst+p}, v{O+2*p}, v{O+2*p+1}")
    a.e(f"""buffer_store_dwordx4 v[16:19], v4, {sr(sWS,4)}, s{T1} offen sc1
buffer_store_dwordx4 v[24:27], v4, {sr(sWS,4)}, s{T2} offen sc1
v_permlane32_swap_b32 v20, v28
v_permlane32_swap_b32 v21, v29
buffer_store_dwordx2 v[20:21], v5, {sr(sWS,4)}, s{T3} offen sc1""")
    lane32x4(a,vXA)
    flag_off(a,sXO,AF,((sQB,7),),10)
    flag_off(a,sOwn,AF,((sQB,7),(sH,2)))
    sync_begin(a,0,10)
    stamp(a,12)
    w1_load(a)
    stamp(a,18)

vW2D=228
def w2_addr(a):
    a.e(f"""v_lshrrev_b32 v2, 3, v{vL}
v_lshlrev_b32 v2, 12, v2
v_bfe_u32 v3, v{vL}, 4, 2
v_lshlrev_b32 v3, 1, v3
v_and_b32 v4, 7, v{vL}
v_xor_b32 v3, v3, v4
v_lshl_add_u32 v{vW2D}, v3, 4, v2""")
def w2_dma(a, steps):
    a.e(f"""s_mul_i32 s{T0}, s{sWave}, {384*4096}
s_lshl_b32 s{T1}, s{sRB}, 7
s_add_u32 s{T0}, s{T0}, s{T1}
s_mul_i32 s{T1}, s{sWave}, {WREG}""")
    for st in steps:
        for n in range(4):
            a.e(f"s_add_u32 m0, s{T1}, {(st%10)*4096+n*1024}\ns_add_u32 s{T2}, s{T0}, {(32*st+8*n)*4096}\nbuffer_load_dwordx4 v{vW2D}, {sr(sW2,4)}, s{T2} offen lds")

def wo_read(a,t,slot):
    for i in range(5):
        for u in range(2):
            if t<16: base,off=(4,(40*t+8*u)*160+32*i)
            else: base,off=(6,(160*(t-16)+20*u)*160+32*i)
            if off>=51200: base+=1; off-=51200
            a.e(f"ds_read_b64_tr_b16 {vr(120+slot*20+4*i+2*u,2)}, v{base} offset:{off}")

def outproj(a):
    a.c("==== out-proj")
    a.e(f"""v_lshrrev_b32 v2, 5, v{vL}
v_mul_u32_u24 v2, 20, v2
v_bfe_u32 v3, v{vL}, 2, 3
v_add_u32 v2, v2, v3
v_mul_u32_u24 v2, 160, v2
v_and_b32 v8, 3, v{vL}
v_lshl_add_u32 v4, v8, 3, v2
v_add_u32 v5, 51200, v4
v_lshrrev_b32 v2, 4, v{vL}
v_mul_u32_u24 v2, 40, v2
v_bfe_u32 v3, v{vL}, 2, 2
v_add3_u32 v2, v2, v3, 16
v_mul_u32_u24 v2, 160, v2
v_lshl_add_u32 v6, v8, 3, v2
v_add_u32 v7, 51200, v6""")
    for t in range(6): wo_read(a,t,t)
    a.e(f"""s_mul_i32 s{T0}, s{sL}, {XB_L}
s_add_u32 s{T0}, s{T0}, {OB}
s_lshl_b32 s{T1}, s{sRB}, 2
s_add_u32 s{T1}, s{T1}, s{sWave}
s_mul_i32 s{T1}, s{T1}, 20480
s_add_u32 s{T0}, s{T0}, s{T1}
v_lshlrev_b32 v2, 4, v{vL}
v_lshlrev_b32 v3, 3, v{vL}""")
    sync_end(a)
    stamp(a,13)
    vm=VM(a)
    for t in range(20):
        if t<16: a.e(f"buffer_load_dwordx4 {vr(40+4*t,4)}, v2, {sr(sWS,4)}, s{T0} offen offset:{1024*(t%4)}"); vm.issue(t)
        else:
            for u in range(2): a.e(f"buffer_load_dwordx2 {vr(40+4*t+2*u,2)}, v3, {sr(sWS,4)}, s{T0} offen offset:{1024*(t%4)+512*u}"); vm.issue(t)
        if t%4==3: a.e(f"s_add_u32 s{T0}, s{T0}, 4096")
    a.e("s_waitcnt lgkmcnt(0)")
    for t in range(20):
        vm.wait(t)
        if t>=6: a.e(f"s_waitcnt lgkmcnt({10 if t<15 else 0})")
        for i in range(5): a.e(m16(16+4*i,120+(t%6)*20+4*i,40+4*t,"0" if t==0 else None))
        if t+6<20: wo_read(a,t+6,t%6)
    stamp(a,14)
    a.e("s_barrier")
    w2_addr(a)
    if EV("W2S","0"): w2_dma(a,(0,1))
    a.c("epilogue: residual, stats, exchange, normalise, transpose, store H")
    a.e(f"s_mov_b32 s{T0}, 0xffff0000")
    for i in range(10):
        a.e(f"v_lshlrev_b32 v{40+2*i}, 16, v{RES+i}\nv_and_b32 v{41+2*i}, s{T0}, v{RES+i}")
    for i in range(10):
        a.e(f"v_pk_add_f32 {vr(16+2*i,2)}, {vr(16+2*i,2)}, {vr(40+2*i,2)}")
    for i in range(10): a.e(f"v_cvt_pk_bf16_f32 v{RES+i}, v{16+2*i}, v{17+2*i}")
    tile_stats(a,16,40,41,42)
    stat_addr(a,43,None)
    a.e(f"""s_mul_i32 s{T2}, s{sL}, {STAT_L}
s_add_u32 s{T2}, s{T2}, {STAT}
s_lshl_b32 s{T0}, s{sDT}, 3
s_add_u32 s{T1}, s{T0}, s{T2}
s_mov_b64 exec, 0xffff
buffer_store_dwordx2 v[40:41], v43, {sr(sWS,4)}, s{T1} offen sc1
s_mov_b64 exec, -1
v_and_b32 v44, 48, v{vL}
v_add_u32 v44, v43, v44
s_mov_b32 s{T6}, s{T2}""")
    a.e(f"""s_mul_i32 s{T3}, s{sWave}, {WREG}
s_add_u32 s{T3}, s{T3}, 28672
v_and_b32 v2, 15, v{vL}
v_mul_u32_u24 v45, 160, v2
v_lshrrev_b32 v3, 4, v{vL}
v_lshl_add_u32 v45, v3, 3, v45
v_add_u32 v45, s{T3}, v45
v_lshrrev_b32 v4, 5, v{vL}
v_bfe_u32 v5, v{vL}, 2, 2
v_lshl_add_u32 v5, v4, 3, v5
v_mul_u32_u24 v46, 160, v5
v_and_b32 v5, 16, v{vL}
v_lshl_add_u32 v46, v5, 1, v46
v_and_b32 v5, 3, v{vL}
v_lshl_add_u32 v46, v5, 3, v46
v_add_u32 v46, s{T3}, v46
s_mul_i32 s{T4}, s{sL}, {XB_L}
s_add_u32 s{T4}, s{T4}, {HB}
s_lshl_b32 s{T5}, s{sRB}, 2
s_add_u32 s{T5}, s{T5}, s{sWave}
s_lshl_b32 s{T5}, s{T5}, 10
s_add_u32 s{T4}, s{T4}, s{T5}
s_mul_i32 s{T5}, s{sDT}, 5
v_bfe_u32 v5, v{vL}, 4, 1
v_add_u32 v5, s{T5}, v5
v_lshlrev_b32 v6, 9, v4
v_lshl_add_u32 v6, v2, 4, v6""")
    for n in range(3):
        a.e(f"""v_add_u32 v7, {2*n}, v5
v_lshrrev_b32 v8, 1, v7
v_lshlrev_b32 v8, 17, v8
v_and_b32 v7, 1, v7
v_lshl_add_u32 v8, v7, 8, v8
v_add_u32 v{47+n}, v8, v6""")
    stamp(a,15)
    lab=a.label("SPOLL")
    a.e(f"""s_mov_b32 s{sSpin}, {SPIN}
{lab}:
buffer_load_dwordx4 v[52:55], v44, {sr(sWS,4)}, s{T6} offen sc1
s_sub_u32 s{sSpin}, s{sSpin}, 1
s_cbranch_scc1 L_exit
s_waitcnt vmcnt(0)
v_max_u32 v56, v52, v53
v_max3_u32 v56, v56, v54, v55
v_cmp_eq_u32 vcc, -1, v56
s_cbranch_vccnz {lab}
v_add_f32 v52, v52, v54
v_add_f32 v53, v53, v55""")
    stamp(a,16)
    if EV("W2S","0"): w2_dma(a,(2,3))
    xsum(a,52,54); xsum(a,53,54)
    a.e(f"""s_mov_b32 s{T0}, 0x{f2u(1/640):x}
s_mov_b32 s{T1}, 0x{f2u(1e-5):x}
v_mul_f32 v52, s{T0}, v52
v_mul_f32 v53, s{T0}, v53
v_fma_f32 v53, -v52, v52, v53
v_max_f32 v53, 0, v53
v_add_f32 v54, s{T1}, v53
v_rsq_f32 v54, v54
s_nop 0
v_mul_f32 v53, v53, v54
v_fma_f32 v53, v53, v54, s{T1}
v_rsq_f32 v53, v53
s_nop 0
v_mul_f32 v54, v54, v53
v_mul_f32 v56, -v52, v54""")
    for i in range(10):
        a.e(f"v_pk_fma_f32 {vr(16+2*i,2)}, {vr(16+2*i,2)}, v[54:55], v[56:57] op_sel_hi:[1,0,0]")
    for i in range(10): a.e(f"v_cvt_pk_bf16_f32 v{60+i}, v{16+2*i}, v{17+2*i}")
    for i in range(5): a.e(f"ds_write_b64 v45, {vr(60+2*i,2)} offset:{32*i}")
    a.e("s_waitcnt lgkmcnt(0)")
    for n in range(3):
        for u in range(2): a.e(f"ds_read_b64_tr_b16 {vr(72+4*n+2*u,2)}, v46 offset:{640*u+64*n}")
    a.e(f"s_mov_b32 s{sE}, 0xffff\ns_mov_b32 s{sE+1}, 0xffff\ns_waitcnt lgkmcnt(0)")
    for n in range(3):
        if n==2: a.e(f"s_mov_b64 exec, s[{sE}:{sE+1}]")
        a.e(f"buffer_store_dwordx4 {vr(72+4*n,4)}, v{47+n}, {sr(sWS,4)}, s{T4} offen sc1")
    a.e("s_mov_b64 exec, -1")
```

```python
from gen2 import *
import gen2
def gemm1(a):
    a.e(f"""s_lshl_b32 s{T0}, s{sRB}, 2
s_add_u32 s{T0}, s{T0}, s{sWave}
s_lshl_b32 s{T0}, s{T0}, 5
v_and_b32 v8, 15, v{vL}
v_lshlrev_b32 v8, 1, v8
buffer_load_ushort v229, v8, {sr(sB2,4)}, s{T0} offen""")
    a.e(f"""s_mul_i32 s{T2}, s{sDT1}, 205
s_lshr_b32 s{T2}, s{T2}, 8
s_mul_i32 s{T3}, s{sDT1}, 64
s_add_u32 s{T3}, s{T3}, 63
s_mul_i32 s{T3}, s{T3}, 820
s_lshr_b32 s{T3}, s{T3}, 16
s_sub_u32 s{T3}, s{T3}, s{T2}
s_lshl_b32 s{T3}, s{T3}, 7
v_lshrrev_b32 v4, 5, v{vL}
v_mul_u32_u24 v4, s{T3}, v4""")
    lane32x4(a,vXA)
    a.e(f"v_add_u32 v{vXA}, v4, v{vXA}")
    flag_off(a,sXO,HF,((T2,7),),10)
    flag_off(a,sOwn,HF,((sDT,7),(sRB,2)))
    sync_begin(a,1,10)
    W2G=EV("W2G","0"); G0=EV("G0","0")
    if W2G:
        if G0: w2_dma(a,range(G0))
    elif EV("W2D","1"):
        lab=a.label("W2W0")
        a.e(f"s_cmp_eq_u32 s{sWave}, 0\ns_cbranch_scc1 {lab}")
        w2_dma(a,range(7))
        a.e(f"""s_mul_i32 s{T1}, s{sWave}, 9
s_sub_u32 s{T1}, s{T1}, 9
s_lshl_b32 s{T0}, s{T1}, 15
s_lshl_b32 s{T1}, s{T1}, 10
s_lshl_b32 s{T2}, s{sRB}, 7
s_add_u32 s{T0}, s{T0}, s{T2}""")
        for k in range(10): a.e(f"s_add_u32 m0, s{T1}, {1024*k}\ns_add_u32 s{T2}, s{T0}, {32768*k}\nbuffer_load_dwordx4 v{vW2D}, {sr(sW2,4)}, s{T2} offen lds")
        a.e(f"{lab}:")
    else: w2_dma(a,range(7))
    stamp(a,17)
    skip=a.label("NOG1")
    a.e(f"s_cmp_eq_u32 s{sG1}, 0\ns_cbranch_scc1 {skip}")
    a.c("==== G1")
    a.e(f"""s_lshl_b32 s{T0}, s{sFT}, 7
s_lshr_b32 s{T1}, s{sWave}, 1
s_lshl_b32 s{T1}, s{T1}, 6
s_add_u32 s{T0}, s{T0}, s{T1}
v_lshrrev_b32 v2, 5, v{vL}
v_lshlrev_b32 v2, 3, v2""")
    for q in range(4): a.e(f"buffer_load_dwordx2 {vr(208+2*q,2)}, v2, {sr(sB1,4)}, s{T0} offen offset:{16*q}")
    a.e(f"""s_mul_i32 s{T0}, s{sL}, {XB_L}
s_add_u32 s{T0}, s{T0}, {HB}
s_lshl_b32 s{T1}, s{sDT1}, 18
s_add_u32 s{T0}, s{T0}, s{T1}
s_lshl_b32 s{T1}, s{sWave}, 15
s_add_u32 s{T0}, s{T0}, s{T1}
s_and_b32 s{T1}, s{sWave}, 1
s_lshl_b32 s{T1}, s{T1}, 17
v_lshlrev_b32 v2, 4, v{vL}
v_add_u32 v2, s{T1}, v2
v_xor_b32 v3, 0x20000, v2""")
    sync_end(a)
    stamp(a,19)
    vm=VM(a); RD=16; QT=EV("QT","15")
    def ld(t):
        r=80+(t%RD)*8
        for e in range(2):
            a.e(f"buffer_load_dwordx4 {vr(r+4*e,4)}, v{2+e}, {sr(sWS,4)}, s{T0} offen offset:{1024*(t%4)}"); vm.issue(t)
        if t%4==3: a.e(f"s_add_u32 s{T0}, s{T0}, 4096")
    for t in range(RD): ld(t)
    for t in range(32):
        vm.wait(t)
        r=80+(t%RD)*8
        for k in range(4):
            a.e(m32(16+16*k,(t*2+k//2)*4,r+4*(k%2),"0" if t==0 else None,ak="a"))
        if t+RD<32: ld(t+RD)
        if W2G and t==QT:
            a.e(f"""s_mul_i32 s{T3}, s{sWave}, {384*4096}
s_lshl_b32 s{T1}, s{sRB}, 7
s_add_u32 s{T3}, s{T3}, s{T1}
s_mul_i32 s{T1}, s{sWave}, {WREG}""")
        if W2G and t>QT:
            for q in (2*(t-QT-1)+4*G0,2*(t-QT-1)+4*G0+1):
                if q<28:
                    a.e(f"s_add_u32 m0, s{T1}, {q*1024}\ns_add_u32 s{T2}, s{T3}, {8*q*4096}\nbuffer_load_dwordx4 v{vW2D}, {sr(sW2,4)}, s{T2} offen lds"); vm.issue("w2")
        if EV("W2P","0") and t==QT:
            a.e(f"""s_mul_i32 s{T3}, s{sWave}, {384*4096}
s_lshl_b32 s{T1}, s{sRB}, 7
s_add_u32 s{T3}, s{T3}, s{T1}
s_add_u32 s{T3}, s{T3}, {224*4096}
v_lshlrev_b32 v14, 12, v{vL}""")
        if EV("W2P","0") and QT+3<t<=QT+6:
            a.e(f"buffer_load_dword v15, v14, {sr(sW2,4)}, s{T3} offen\ns_add_u32 s{T3}, s{T3}, {64*4096}"); vm.issue("pf")
        if EV("QPF","0")==2 and t==QT:
            a.e(f"""s_lshl_b32 s{T6}, s{gen2.sW1F}, 7
v_mul_u32_u24 v12, s{T6}, v{vL}
s_mul_i32 s{T5}, s{sH}, 92160
s_mul_i32 s{T6}, s{sWave}, 24576
s_add_u32 s{T5}, s{T5}, s{T6}
s_add_u32 s{T5}, s{T5}, {WQP}""")
        if EV("QPF","0")==2 and QT<t<=QT+3:
            a.e(f"buffer_load_dword v13, v12, {sr(sWS,4)}, s{T5} offen\ns_add_u32 s{T5}, s{T5}, 8192"); vm.issue("pf")
    stamp(a,20)
    a.c("reduce")
    a.e(f"v_lshlrev_b32 v4, 4, v{vL}")
    for k in range(1,4):
        a.e(f"s_xor_b32 s{T0}, s{sWave}, {k}\ns_mul_i32 s{T0}, s{T0}, {WREG}\ns_add_u32 s{T0}, s{T0}, {28672+(k-1)*4096}\nv_add_u32 v{4+k}, s{T0}, v4")
    a.e(f"s_mul_i32 s{T0}, s{sWave}, {WREG}\ns_add_u32 s{T0}, s{T0}, 28672\nv_add_u32 v4, s{T0}, v4")
    for k in range(1,4):
        for q in range(4): a.e(f"ds_write_b128 v{4+k}, {vr(16+16*k+4*q,4)} offset:{1024*q}")
    a.e("s_waitcnt lgkmcnt(0)\ns_barrier")
    for k in range(3):
        for q in range(4): a.e(f"ds_read_b128 {vr(80+16*k+4*q,4)}, v4 offset:{4096*k+1024*q}")
    a.e(f"s_mov_b32 s{T0}, 0xffff0000")
    for i in range(8): a.e(f"v_lshlrev_b32 v{128+2*i}, 16, v{208+i}\nv_and_b32 v{129+2*i}, s{T0}, v{208+i}")
    for i in range(8): a.e(f"v_pk_add_f32 {vr(16+2*i,2)}, {vr(16+2*i,2)}, {vr(128+2*i,2)}")
    for k in range(3):
        a.e(f"s_waitcnt lgkmcnt({8-4*k})")
        for i in range(8): a.e(f"v_pk_add_f32 {vr(16+2*i,2)}, {vr(16+2*i,2)}, {vr(80+16*k+2*i,2)}")
    if EV("W2S","0"): w2_dma(a,(7,8,9))
    k1=-2*math.log2(math.e)*math.sqrt(2/math.pi); k2=k1*0.044715
    a.e(f"v_mov_b32 v8, 0x{f2u(k1):x}\nv_mov_b32 v10, 0x{f2u(k2):x}")
    for i in range(8): a.e(f"v_pk_mul_f32 {vr(32+2*i,2)}, {vr(16+2*i,2)}, {vr(16+2*i,2)}")
    for i in range(8): a.e(f"v_pk_fma_f32 {vr(32+2*i,2)}, {vr(32+2*i,2)}, v[10:11], v[8:9] op_sel_hi:[1,0,0]")
    for i in range(8): a.e(f"v_pk_mul_f32 {vr(32+2*i,2)}, {vr(32+2*i,2)}, {vr(16+2*i,2)}")
    for i in range(16): a.e(f"v_exp_f32 v{32+i}, v{32+i}")
    for i in range(16): a.e(f"v_add_f32 v{32+i}, 1.0, v{32+i}")
    for i in range(16): a.e(f"v_rcp_f32 v{32+i}, v{32+i}")
    a.e(f"""s_mul_i32 s{T0}, s{sL}, {U_L}
s_add_u32 s{T0}, s{T0}, {UB}
s_lshl_b32 s{T1}, s{sDT1}, 1
s_and_b32 s{T2}, s{sWave}, 1
s_add_u32 s{T1}, s{T1}, s{T2}
s_mul_i32 s{T1}, s{T1}, {2*48*1024}
s_add_u32 s{T0}, s{T0}, s{T1}
s_lshl_b32 s{T1}, s{sFT}, 1
s_lshr_b32 s{T2}, s{sWave}, 1
s_add_u32 s{T1}, s{T1}, s{T2}
s_lshl_b32 s{T1}, s{T1}, 10
s_add_u32 s{T0}, s{T0}, s{T1}
v_bfe_u32 v2, v{vL}, 4, 1
v_mul_u32_u24 v2, {48*1024}, v2
v_and_b32 v3, 15, v{vL}
v_lshl_add_u32 v2, v3, 4, v2
v_lshrrev_b32 v3, 5, v{vL}
v_lshl_add_u32 v2, v3, 8, v2""")
    for i in range(8): a.e(f"v_pk_mul_f32 {vr(32+2*i,2)}, {vr(32+2*i,2)}, {vr(16+2*i,2)}")
    for i in range(8): a.e(f"v_cvt_pk_bf16_f32 v{48+i}, v{32+2*i}, v{33+2*i}")
    a.e(f"buffer_store_dwordx4 v[48:51], v2, {sr(sWS,4)}, s{T0} offen sc1\nbuffer_store_dwordx4 v[52:55], v2, {sr(sWS,4)}, s{T0} offen offset:512 sc1")
    u_addrs(a)
    sync_begin(a,0,11)
    done=a.label("G1DONE")
    a.e(f"s_branch {done}\n{skip}:")
    if W2G: w2_dma(a,range(G0,7))
    u_addrs(a)
    a.e("s_waitcnt vmcnt(0)\ns_barrier")
    if EV("W2S","0"): w2_dma(a,(7,8,9))
    a.e(f"{done}:")

def u_addrs(a):
    a.e(f"""s_mul_i32 s{T2}, s{sDT}, 5
s_lshr_b32 s{T2}, s{T2}, 2
v_lshrrev_b32 v12, 5, v{vL}
v_lshlrev_b32 v12, 7, v12
v_and_b32 v9, 31, v{vL}
v_min_u32 v9, 23, v9
v_lshl_add_u32 v{vXA}, v9, 2, v12""")
    flag_off(a,sXO,UF,((T2,7),),11)
    flag_off(a,sOwn,UF,((sDT1,7),(sFT,2)))

def w2_read(a,st):
    for k in range(4):
        for u in range(2):
            a.e(f"ds_read_b64_tr_b16 {vr(196+(st%2)*16+4*k+2*u,2)}, v{4+k} offset:{(st%10)*4096+1024*u}")

def wqp(a,b,cond=False):
    lab=a.label("NOWQ")
    if cond: a.e(f"s_cmp_lg_u32 s{sL}, 0\ns_cbranch_scc1 {lab}")
    if b==0: a.e(f"""s_lshl_b32 s{T5}, s{sWave}, 14
s_mul_i32 s{T6}, s{sH}, 92160
s_add_u32 s{T6}, s{T6}, {WQP}""")
    if b==2:
        a.e(f"""s_cmp_eq_u32 s{sWave}, 0
s_cbranch_scc1 {lab}
s_mul_i32 s{T5}, s{sWave}, 9
s_add_u32 s{T5}, s{T5}, 55
s_min_u32 s{T5}, s{T5}, 81
s_lshl_b32 s{T5}, s{T5}, 10""")
    for g in ((2*b,2*b+1) if b<2 else (0,1,2)):
        a.e(f"s_add_u32 m0, s{T5}, {4096*g}\ns_add_u32 s{T2}, s{T6}, m0")
        for k in range(4 if g<2 or b<2 else 1): a.e(f"buffer_load_dwordx4 v9, {sr(sWS,4)}, s{T2} offen offset:{1024*k} lds")
    if b==2: a.e(f"{lab}:")
    if cond: a.e(f"{lab}:")

def gemm2(a):
    stamp(a,21)
    a.c("==== G2")
    a.e(f"""v_lshrrev_b32 v2, 5, v{vL}
v_bfe_u32 v3, v{vL}, 2, 3
v_lshl_add_u32 v2, v2, 4, v3
v_lshlrev_b32 v2, 7, v2
s_mul_i32 s{T0}, s{sWave}, {WREG}
v_add_u32 v2, s{T0}, v2
v_and_b32 v3, 1, v{vL}
v_lshl_add_u32 v2, v3, 3, v2
v_bfe_u32 v3, v{vL}, 1, 1
v_lshl_add_u32 v2, v3, 4, v2
v_bfe_u32 v3, v{vL}, 3, 2
v_xor_b32 v3, s{sWave}, v3""")
    for k in range(4):
        a.e(f"v_xor_b32 v8, {k}, v3\nv_lshl_add_u32 v{4+k}, v8, 5, v2")
    stamp(a,22)
    w2_read(a,0); w2_read(a,1)
    a.e("s_waitcnt lgkmcnt(0)")
    w2_dma(a,(10,11) if EV("W2S","0") else (7,8,9,10,11))
    if EV("QPF","0")==1:
        lab=a.label("NOQPF")
        a.e(f"""s_cmp_eq_u32 s{gen2.sW1F}, 0
s_cbranch_scc1 {lab}
s_cmp_eq_u32 s{sWave}, 0
s_cbranch_scc1 {lab}
s_mul_i32 s{T5}, s{sH}, 92160
s_lshl_b32 s{T6}, s{sWave}, 15
s_add_u32 s{T5}, s{T5}, s{T6}
s_add_u32 s{T5}, s{T5}, {WQP-32768}
v_lshlrev_b32 v12, 7, v{vL}""")
        for k in range(4): a.e(f"buffer_load_dword v13, v12, {sr(sWS,4)}, s{T5} offen\ns_add_u32 s{T5}, s{T5}, 8192")
        a.e(f"{lab}:")
    a.e(f"""s_mul_i32 s{T0}, s{sL}, {U_L}
s_add_u32 s{T0}, s{T0}, {UB}
s_mul_i32 s{T1}, s{sDT}, {5*48*1024}
s_add_u32 s{T0}, s{T0}, s{T1}
s_mul_i32 s{T1}, s{sWave}, {12*1024}
s_add_u32 s{T0}, s{T0}, s{T1}
s_add_u32 s{T1}, s{T0}, {48*1024}
s_add_u32 s{T2}, s{T1}, {48*1024}
s_add_u32 s{T3}, s{T2}, {48*1024}
s_add_u32 s{T4}, s{T3}, {48*1024}
v_lshlrev_b32 v9, 4, v{vL}
v_add_u32 v10, 4096, v9
v_add_u32 v11, 8192, v9""")
    sync_end(a)
    stamp(a,23)
    vm=VM(a); RD=5
    def ld(t):
        for i in range(5):
            a.e(f"buffer_load_dwordx4 {vr(96+(t%RD)*20+4*i,4)}, v{9+t//4}, {sr(sWS,4)}, s{T0+i} offen offset:{1024*(t%4)}"); vm.issue(t)
    for t in range(RD): ld(t)
    for t in range(12):
        vm.wait(t)
        if t>=2: a.e(f"s_waitcnt lgkmcnt({8 if t<11 else 0})")
        for k in range(4):
            for i in range(5):
                a.e(m16(16+(i*4+k)*4,96+(t%RD)*20+4*i,196+(t%2)*16+4*k,"0" if t==0 else None))
        if t+RD<12: ld(t+RD)
        if t+2<12: w2_read(a,t+2)
    stamp(a,24)
    a.e("s_barrier")
    wqp(a,0,True)
    a.e(f"v_lshlrev_b32 v4, 4, v{vL}")
    for k in range(1,4):
        a.e(f"s_xor_b32 s{T0}, s{sWave}, {k}\ns_mul_i32 s{T0}, s{T0}, 15360\ns_add_u32 s{T0}, s{T0}, {RING+(k-1)*5120}\nv_add_u32 v{4+k}, s{T0}, v4")
    a.e(f"s_mul_i32 s{T0}, s{sWave}, 15360\ns_add_u32 s{T0}, s{T0}, {RING}\nv_add_u32 v4, s{T0}, v4")
    for k in range(1,4):
        for i in range(5): a.e(f"ds_write_b128 v{4+k}, {vr(16+(i*4+k)*4,4)} offset:{1024*i}")
    a.e("s_waitcnt lgkmcnt(0)\ns_barrier")
    for k in range(3):
        for i in range(5): a.e(f"ds_read_b128 {vr(112+20*k+4*i,4)}, v4 offset:{5120*k+1024*i}")
    a.e(f"s_mov_b32 s{T0}, 0xffff0000\nv_lshlrev_b32 v8, 16, v229")
    for i in range(10):
        a.e(f"v_lshlrev_b32 v{176+2*i}, 16, v{RES+i}\nv_and_b32 v{177+2*i}, s{T0}, v{RES+i}")
    for i in range(10):
        a.e(f"v_pk_add_f32 {vr(176+2*i,2)}, {vr(176+2*i,2)}, v[8:9] op_sel_hi:[1,0]")
    for i in range(10):
        a.e(f"v_pk_add_f32 {vr(176+2*i,2)}, {vr(176+2*i,2)}, {vr(16+(i//2)*16+2*(i%2),2)}")
    for k in range(3):
        a.e(f"s_waitcnt lgkmcnt({10-5*k})")
        for i in range(10): a.e(f"v_pk_add_f32 {vr(176+2*i,2)}, {vr(176+2*i,2)}, {vr(112+20*k+2*i,2)}")
    if not EV("WQL"): wqp(a,1,True)
    for i in range(10): a.e(f"v_cvt_pk_bf16_f32 v{RES+i}, v{176+2*i}, v{177+2*i}")
    l1=a.label("OUT1"); l2=a.label("OUT2")
    a.e(f"s_cmp_lg_u32 s{sL}, 0\ns_cbranch_scc1 {l1}")
    frag_addr(a,X2+XB_L)
    a.e(f"""s_branch {l2}
{l1}:
v_and_b32 v5, 15, v{vL}
v_bfe_u32 v6, v{vL}, 4, 1
v_lshrrev_b32 v7, 5, v{vL}
s_lshl_b32 s{T0}, s{sRB}, 2
s_add_u32 s{T0}, s{T0}, s{sWave}
s_mul_i32 s{T0}, s{T0}, {16*1280}
s_mul_i32 s{T1}, s{sDT}, 160
s_add_u32 s{T0}, s{T0}, s{T1}
v_mul_u32_u24 v5, 1280, v5
v_lshl_add_u32 v5, v7, 4, v5
v_lshl_add_u32 v2, v6, 5, v5
v_add_u32 v3, 64, v2
v_lshl_add_u32 v4, v6, 3, v5
v_add_u32 v4, 128, v4
{l2}:""")
    x_store(a,sGO,16)
    a.e(f"""s_cmp_lg_u32 s{sL}, 0
s_cbranch_scc1 L_fin""")
    stamp(a,25)
    tile_stats(a,24,44,45,46)
    stat_addr(a,47,None)
    a.e(f"""s_lshl_b32 s{T0}, s{sDT}, 3
s_add_u32 s{T1}, s{T0}, {XSTAT+STAT_L}
s_mov_b64 exec, 0xffff
buffer_store_dwordx2 v[44:45], v47, {sr(sWS,4)}, s{T1} offen sc1
s_mov_b64 exec, -1
s_mov_b32 s{sL}, 1""")
    x_addrs(a)
    sync_begin(a,0,10)
    if EV("WQL"): wqp(a,1)
    wqp(a,2)
    for i in range(4): a.e(f"s_mov_b32 s{sGO+i}, s{sOUT+i}")
    a.e("s_branch L_layer")

def build():
    a=Asm()
    prologue(a); phase1(a); attention(a); outproj(a); gemm1(a); gemm2(a)
    gen2.attn_tails()
    a.e(f"""L_fin:
s_or_b32 s{T0}, s2, s{sWave}
s_cmp_lg_u32 s{T0}, 0
s_cbranch_scc1 L_noep""")
    a.e(f"s_mov_b32 s{T0}, 0"); flag_set(a,T0)
    a.e("L_noep:")
    stamp_out(a)
    a.e("L_exit:\ns_endpgm")
    hdr=open("cdna_kernels/"+NAME+".s.ref").read().split("; Override")[0]
    body=a.text()
    s=hdr+f"""; @launch grid=(256,1,1) block=(256,1,1) lds={LDS_SIZE}
.amdgcn_target "amdgcn-amd-amdhsa--gfx950"
.text
.globl {NAME}_kernel
.p2align 8
.type {NAME}_kernel,@function
{NAME}_kernel:
{body}.section .rodata,"a"
.p2align 6
.amdhsa_kernel {NAME}_kernel
  .amdhsa_next_free_vgpr 512
  .amdhsa_next_free_sgpr 102
  .amdhsa_accum_offset 256
  .amdhsa_group_segment_fixed_size 0
  .amdhsa_kernarg_size 88
  .amdhsa_user_sgpr_count 2
  .amdhsa_user_sgpr_kernarg_segment_ptr 1
  .amdhsa_system_sgpr_workgroup_id_x 1
.end_amdhsa_kernel
"""
    return s,body
if __name__=="__main__":
    import sys
    s,body=build()
    out=sys.argv[1] if len(sys.argv)>1 else "cdna_kernels/"+NAME+".s"
    open(out,"w").write(s)
    p=check(body)
    print(len(body.split("\n")),"lines;",len(p),"hazard problems")
    for x in p[:40]: print(x)
```
